```python
import torch

def _softmax(x, axis=-1):
    return torch.softmax(x, dim=axis)
def _gelu(x):
    return torch.nn.functional.gelu(x, approximate="tanh")
def _silu(x):
    return torch.nn.functional.silu(x)
def _sigmoid(x):
    return torch.sigmoid(x)
def _layernorm(x, axis=-1, eps=1e-5):
    m = x.mean(dim=axis, keepdim=True)
    v = x.var(dim=axis, keepdim=True, unbiased=False)
    return (x - m) / torch.sqrt(v + eps)
def _scatter_add(tgt, idx, src, axis=0):
    return tgt.clone().index_add_(axis, idx, src)
def _segment_sum(src, seg, n):
    out = torch.zeros((n,) + src.shape[1:], dtype=src.dtype)
    return out.index_add_(0, seg, src)
def _pad(x, pw):
    flat = tuple(v for pair in reversed(pw) for v in pair)
    return torch.nn.functional.pad(x, flat)

kernel_name = 'standalone__deformable_dcnv1__vision'

def setup_inputs():

    _w = (lambda a: (lambda t: t.to(torch.bfloat16) if t.is_floating_point() else t)(torch.as_tensor(a)))
    H = W = 224
    C = 96
    K = 5
    return {
        "x": _w((lambda *s: torch.randn(*s, dtype=torch.bfloat16) * 0.05)(1, H, W, C)),
        "offset": _w((lambda *s: torch.randn(*s, dtype=torch.bfloat16) * 0.05)(1, H, W, 2 * K * K) * 0.5),
        "w": _w((lambda *s: torch.randn(*s, dtype=torch.bfloat16) * 0.05)(K, K, C, C) * (K * K * C) ** -0.5),
    }

def reference(x, offset, w):
    B, H, W, C = x.shape
    K = 5
    hh = (lambda x, dt: x.to(dt))(torch.arange(H), x.dtype).reshape(1, H, 1)
    ww = (lambda x, dt: x.to(dt))(torch.arange(W), x.dtype).reshape(1, 1, W)
    xf = x.reshape(B, H * W, C)
    def _gather(yi, xi):
        lin = (yi * W + xi).reshape(B, H * W)
        idx = (lambda x, n, axis: torch.repeat_interleave(x, n, dim=axis))(lin[..., None], C, axis=-1)
        return (lambda x, i, axis: torch.take_along_dim(x, i, dim=axis))(xf, idx, axis=1).reshape(B, H, W, C)
    taps = []
    for ki in range(K):
        for kj in range(K):
            t = ki * K + kj
            dy = offset[..., 2 * t]
            dx = offset[..., 2 * t + 1]
            py = torch.clip(hh + (ki - 0.5 * (K - 1)) + dy, 0.0, H - 1.0)
            px = torch.clip(ww + (kj - 0.5 * (K - 1)) + dx, 0.0, W - 1.0)
            y0 = torch.floor(py)
            x0 = torch.floor(px)
            y1 = torch.clip(y0 + 1.0, 0.0, H - 1.0)
            x1 = torch.clip(x0 + 1.0, 0.0, W - 1.0)
            wy = (py - y0)[..., None]
            wx = (px - x0)[..., None]
            y0i = (lambda x, dt: x.to(dt))(y0, torch.int64)
            y1i = (lambda x, dt: x.to(dt))(y1, torch.int64)
            x0i = (lambda x, dt: x.to(dt))(x0, torch.int64)
            x1i = (lambda x, dt: x.to(dt))(x1, torch.int64)
            v = (1 - wy) * (1 - wx) * _gather(y0i, x0i) + (1 - wy) * wx * _gather(y0i, x1i) + wy * (1 - wx) * _gather(y1i, x0i) + wy * wx * _gather(y1i, x1i)
            taps.append(v)
    samp = torch.stack(taps, 3)
    return torch.einsum("bhwkc,kco->bhwo", samp, w.reshape(K * K, C, C))
```

```python
import re

def regs(x):
    if not isinstance(x, str): return set()
    x = x.strip()
    if x.startswith('-') or x.startswith('|'): x = x.strip('-|')
    m = re.fullmatch(r'([vas])(\d+)', x)
    if m: return {x}
    m = re.fullmatch(r'([vas])\[(\d+):(\d+)\]', x)
    if m: return {f"{m.group(1)}{i}" for i in range(int(m.group(2)), int(m.group(3))+1)}
    if x == 'vcc': return {'vcc'}
    if x == 'm0': return {'m0'}
    if x == 'exec': return {'exec'}
    return set()

def vr(b, n=1, p='v'):
    return f"{p}{b}" if n == 1 else f"{p}[{b}:{b+n-1}]"
def sr(b, n=1): return vr(b, n, 's')

class Ins:
    __slots__ = ('t', 'k', 'rd', 'wr', 'need', 'res', 'c', 'ab', 'wide')
    def __init__(s, t, k, rd=(), wr=(), need=(), res=None):
        s.t = t; s.k = k; s.rd = set(rd); s.wr = set(wr); s.need = set(need); s.res = res
        s.c = set(); s.ab = set(); s.wide = False
    def __repr__(s): return s.t

def fmt(x):
    if isinstance(x, float):
        import struct
        if x in (0.5, 1.0, 2.0, 4.0, -0.5, -1.0, -2.0, -4.0): return repr(x)
        if x == 0.0: return "0"
        return hex(struct.unpack('<I', struct.pack('<f', x))[0])
    if isinstance(x, int):
        return str(x) if -16 <= x <= 64 else hex(x & 0xffffffff)
    return x

def V(op, dst, *src, mod=''):
    rd = set()
    for s in src: rd |= regs(s)
    wr = regs(dst)
    ops = [dst] + list(src)
    if op.startswith('v_cndmask') and len(src) == 2:
        rd.add('vcc'); ops.append('vcc')
    if op.startswith('v_fmac') or op.startswith('v_mac'): rd |= wr
    t = op + ' ' + ', '.join(fmt(o) for o in ops) + (' ' + mod if mod else '')
    return Ins(t, 'valu', rd, wr)

def S(op, dst, *src):
    rd = set()
    for s in src: rd |= regs(s)
    if op.startswith('s_cmp') or op.startswith('s_bitcmp'):
        rd |= regs(dst); wr = set()
    else:
        wr = regs(dst)
    t = op + ' ' + ', '.join(fmt(o) for o in [dst] + list(src))
    return Ins(t, 'salu', rd, wr)

def MF(d, a, b, c):
    i = Ins(f"v_mfma_f32_16x16x32_bf16 {d}, {a}, {b}, {fmt(c)}", 'mfma', regs(a) | regs(b) | regs(c), regs(d))
    i.c = regs(c); i.ab = regs(a) | regs(b)
    return i

def _off(o): return f" offset:{o}" if o else ""
def DSR(op, dst, addr, off=0, need=()):
    assert 0 <= off < 65536, off
    return Ins(f"{op} {dst}, {addr}{_off(off)}", 'ds', regs(addr), regs(dst), need)
def DSW(op, addr, data, off=0):
    assert 0 <= off < 65536, off
    return Ins(f"{op} {addr}, {data}{_off(off)}", 'ds', regs(addr) | regs(data), ())
def BPERM(dst, addr, src, off=0):
    return Ins(f"ds_bpermute_b32 {dst}, {addr}, {src}{_off(off)}", 'ds', regs(addr) | regs(src), regs(dst))
def BL(op, dst, vaddr, srd, soff, off=0, mod=''):
    assert 0 <= off < 4096
    return Ins(f"{op} {dst}, {vaddr}, {srd}, {fmt(soff)} offen{_off(off)}{mod}", 'vm', regs(vaddr) | regs(srd) | regs(soff), regs(dst))
def DMA(vaddr, srd, soff, off=0, res=None, need=(), mod=''):
    assert 0 <= off < 4096
    i = Ins(f"buffer_load_dwordx4 {vaddr}, {srd}, {fmt(soff)} offen{_off(off)} lds{mod}", 'vm', regs(vaddr) | regs(srd) | regs(soff) | {'m0'}, (), need, res)
    i.k = 'dma'
    return i
def BS(op, data, vaddr, srd, soff, off=0, mod=''):
    i = Ins(f"{op} {data}, {vaddr}, {srd}, {fmt(soff)} offen{_off(off)}{mod}", 'vm', regs(data) | regs(vaddr) | regs(srd) | regs(soff), ())
    i.wide = op.endswith('x3') or op.endswith('x4')
    i.ab = regs(data)
    return i
def RAW(t, k='other'): return Ins(t, k)

class State:
    def __init__(s):
        s.lg = {}; s.vm = {}
        s.hz = {}
    def copy(s):
        n = State(); n.lg = dict(s.lg); n.vm = dict(s.vm); n.hz = dict(s.hz); return n
    @staticmethod
    def merge(sts):
        n = State()
        for st in sts:
            for a, b in ((n.lg, st.lg), (n.vm, st.vm), (n.hz, st.hz)):
                for k, v in b.items():
                    a[k] = min(a[k], v) if k in a else v
        return n
    def key(s): return (tuple(sorted(s.lg.items())), tuple(sorted(s.vm.items())), tuple(sorted(s.hz.items())))
    def covers(s, o):
        for a, b in ((s.lg, o.lg), (s.vm, o.vm), (s.hz, o.hz)):
            for k, v in b.items():
                if k not in a or a[k] > v: return False
        return True

HZMAX = 12
class Asm:
    def __init__(s):
        s.out = []; s.st = State(); s.nops = 0; s.n = 0
    def line(s, t): s.out.append(t)
    def label(s, l): s.out.append(l + ':')
    def _tick(s, k=1):
        h = s.st.hz
        for key in list(h):
            h[key] += k
            if h[key] > HZMAX: del h[key]
    def _raw(s, t, k=1):
        s.out.append(t); s._tick(k); s.n += 1
    def wait(s, lg=None, vm=None):
        p = []
        if vm is not None:
            vm = min(vm, 63); p.append(f"vmcnt({vm})")
            s.st.vm = {k: v for k, v in s.st.vm.items() if v < vm}
        if lg is not None:
            lg = min(lg, 15); p.append(f"lgkmcnt({lg})")
            s.st.lg = {k: v for k, v in s.st.lg.items() if v < lg}
        s._raw("s_waitcnt " + ' '.join(p))
    def need_nops(s, i):
        h = s.st.hz; need = 0
        def chk(kind, rs, req):
            nonlocal need
            for r in rs:
                d = h.get((kind, r))
                if d is not None and d < req: need = max(need, req - d)
        if i.k == 'mfma':
            chk('vw', i.rd, 2)
            chk('mw', i.ab, 8)
            if i.c and i.c != i.wr: chk('mw', i.c, 6)
            if i.c != i.wr: chk('mw', i.wr, 8)
            chk('xw', {'exec'}, 4)
        elif i.k == 'valu':
            chk('mw', i.rd | i.wr, 8)
            chk('mc', i.wr, 3)
            chk('sw', i.rd, 2)
            chk('st', i.wr, 2)
            if i.t.startswith('v_readfirstlane') or i.t.startswith('v_readlane'): chk('vw', i.rd, 1)
        elif i.k in ('ds', 'vm', 'dma'):
            chk('mw', i.rd | i.wr, 8)
            chk('st', i.wr, 1)
            if i.k != 'ds': chk('sw', i.rd, 5)
            if i.k == 'dma': chk('m0', {'m0'}, 1)
        return need
    def emit(s, i):
        if isinstance(i, (list, tuple)):
            for x in i: s.emit(x)
            return
        st = s.st
        touch = i.rd | i.wr | i.need
        lg = [st.lg[r] for r in touch if r in st.lg]
        vm = [st.vm[r] for r in touch if r in st.vm]
        if lg or vm:
            s.wait(min(lg) if lg else None, min(vm) if vm else None)
        n = s.need_nops(i)
        while n > 0:
            k = min(n, 8)
            s._raw(f"s_nop {k-1}", k); s.nops += k; n -= k
        s._raw(i.t)
        h = st.hz
        if i.k == 'valu':
            for r in i.wr:
                if r[0] in 'va' and r != 'vcc': h[('vw', r)] = 0
                elif r == 'exec': h[('xw', r)] = 0
                else: h[('sw', r)] = 0
        elif i.k == 'mfma':
            for r in i.wr: h[('mw', r)] = 0
            for r in i.c: h[('mc', r)] = 0
        elif i.k == 'salu':
            if 'm0' in i.wr: h[('m0', 'm0')] = 0
            for r in i.wr: h.pop(('sw', r), None)
        if i.wide:
            for r in i.ab: h[('st', r)] = 0
        if i.k == 'ds':
            for k in st.lg: st.lg[k] += 1
            for r in i.wr: st.lg[r] = 0
            if not i.wr: st.lg['_dsw'] = 0
        elif i.k in ('vm', 'dma'):
            for k in st.vm: st.vm[k] += 1
            for r in i.wr: st.vm[r] = 0
            if i.res: st.vm[i.res] = 0
            if not i.wr and not i.res: st.vm['_st'] = 0

class Op:
    def __init__(s, ins, deps=(), prio=50, mf=False, name=''):
        s.ins = ins if isinstance(ins, list) else [ins]
        s.deps = list(deps); s.prio = prio; s.mf = mf; s.t = None; s.name = name
    def after(s, o, d=0):
        s.deps.append((o, d)); return s

def schedule(mains, ops, pre=0, lastcap=0, verbose=False):
    out = []; t = 0
    fill = [o for o in ops if not o.mf]; xm = [o for o in ops if o.mf]
    mains = list(mains)
    def ready(o): return all(d.t is not None and t >= d.t + dl for d, dl in o.deps)
    def pick(lst):
        c = [o for o in lst if ready(o)]
        if not c: return None
        return min(c, key=lambda o: (o.prio, lst.index(o)))
    def put(o, cost):
        nonlocal t
        o.t = t; out.extend(o.ins); t += cost
    for _ in range(pre):
        o = pick(fill)
        if o is None or o.prio > 10: break
        fill.remove(o); put(o, 4*len(o.ins))
    stall = 0
    while mains or xm or fill:
        m = pick(xm)
        if m is not None: xm.remove(m)
        elif mains and ready(mains[0]): m = mains.pop(0)
        if m is not None:
            tm = t; put(m, 8)
            left = len(mains) + len(xm)
            nf = sum(len(o.ins) for o in fill)
            cap = 2
            if left == 0: cap = max(lastcap, 0)
            else:
                cap = max(2, -(-(nf - lastcap) // (left + 0)) if nf > 2*left + lastcap else 2)
            used = 0
            while used < cap:
                o = pick(fill)
                if o is None: break
                fill.remove(o); put(o, 4*len(o.ins)); used += len(o.ins)
            t = max(t, tm + 16)
        else:
            o = pick(fill)
            if o is not None:
                fill.remove(o); put(o, 4*len(o.ins))
            else:
                t += 4; stall += 4
                assert stall < 100000, "scheduler deadlock: " + str([(o.name, o.ins[0].t) for o in fill + xm + mains[:1]])
    return out, t
```

```python
import sys, argparse, itertools
from asmlib import *

NAME = "standalone__deformable_dcnv1__vision_kernel"
H = Wd = 224
PP = 208; PPQ = 13
RPQ = 291; RP = RPQ*16
WST0 = 163840 - 4*18432
LAT = 120

SX, SO, SW, SOUT = sr(4,4), sr(8,4), sr(12,4), sr(16,4)
sWave, sH0, sW0, sNv, sVar = 's20', 's21', 's22', 's23', 's24'
sMask = [sr(26+2*d, 2) for d in range(4)]
sOdd = sr(34,2)
IRR, FF, FAR = 36, 44, 52
sIrrT = sr(60,2); sT2 = sr(62,2)
sKyC, sKxC, sOffC, sKyN, sKxN, sOffN, sAN, sWN, sOffN2, sWst = [f"s{i}" for i in range(64,74)]
sF223, sYhi, sXhi, sOffRun, sTb, sR0, sX = [f"s{i}" for i in range(74,81)]
sA, sB, sC, sD, sE, sF = [f"s{i}" for i in range(81,87)]
sH = 's87'
sRet = sr(88,2); sFarY = 's90'; sFarO = 's91'; sDm = 's92'; sOutB = 's93'; sOffSh = 's94'; sLd = 's95'
BIG = 0x40000000

class Regs:
    def __init__(s, mt):
        s.n = 0
        al = s.alloc
        (s.Xr, s.W0, s.W1, s.D0, s.D1, s.D2, s.IA, s.IW, s.Sh, s.Lc, s.iy, s.ix, s.OffV, s.Ylo, s.Xlo, s.C, s.Psel, s.A0) = [al(1) for _ in range(18)]
        s.ng = (mt + 3)//4
        s.off = [al(1) for _ in range(s.ng)]
        s.pair = [al(1) for _ in range(s.ng)]
        s.w2 = [al(1) for _ in range(s.ng)]
        s.w4a = [al(1) for _ in range(s.ng)]
        s.w4b = [al(1) for _ in range(s.ng)]
        s.Y0, s.X0, s.WY, s.WX = [al(1) for _ in range(4)]
        s.T = [al(1) for _ in range(6)]
        s.bp = [al(1) for _ in range(4)]
        s.X = al(24, 4); s.A = al(24, 4); s.D = al(16, 4); s.B = al(8, 4); s.W = al(72, 4)
        nacc = max(0, mt*24 - 256)
        s.acc = al(nacc, 4) if nacc else None
        assert s.n <= 256, s.n
    def alloc(s, n, align=1):
        s.n = (s.n + align - 1)//align*align
        b = s.n; s.n += n
        return b
    def accr(s, r, T, n=4, i=0):
        k = (r*6 + T)*4 + i
        return vr(k, n, 'a') if k < 256 else vr(s.acc + k - 256, n)
    def Wf(s, c, T): return s.W + (c*6 + T)*4
    def Xp(s, p): return s.X + 4*p
v = lambda r, n=1: vr(r, n)

def solve_pool(n, P=6, closed=True):
    start = (0, 1, 2)
    def nxt(c):
        res = []
        for a, b in itertools.permutations([x for x in range(P) if x not in c], 2):
            for d in range(P):
                if d in (c[1], c[2], a, b): continue
                res.append((a, b, d))
        res.sort(key=lambda t: t[2] == c[0])
        return res
    def ok(c, nn): return nn[0] not in c and nn[1] not in c and nn[2] not in (c[1], c[2])
    def rec(seq):
        if len(seq) == n:
            return seq if (not closed or ok(seq[-1], start)) else None
        for x in nxt(seq[-1]):
            r = rec(seq + [x])
            if r: return r
        return None
    r = rec([start]); assert r
    return r

def chain(inss, prio=50, first_deps=(), name=''):
    ops = []; prev = None
    for i in inss:
        o = Op(i, prio=prio, name=name)
        if prev is not None: o.after(prev, 0)
        else:
            for d in first_deps: o.after(*d)
        ops.append(o); prev = o
    return ops

class Mixed:
    def __init__(s, mt, tag):
        s.mt = mt; s.tag = tag; s.R = Regs(mt)
        s.pool = solve_pool(mt)
        ng = s.R.ng
        s.place = {}
        if mt >= 13: s.place = {0: (3, 'n'), 1: (7, 'n'), 2: (10, 'n'), 3: (1, 'c')}
        elif mt >= 9: s.place = {0: (3, 'n'), 1: (6, 'n'), 2: (1, 'c')}
        else: s.place = {0: (3, 'n'), 1: (1, 'c')}
        assert len(s.place) == ng and mt >= 6
        q, rem = divmod(mt, 4)
        sz = [q + (1 if w < rem else 0) for w in range(4)]
        s.r0 = [sum(sz[:w]) for w in range(4)]; s.rsz = sz
        s.stats = []
    def L(s, x): return f"L{s.tag}_{x}"

    def half1(s, j, kind):
        R = s.R; T = R.T
        ky, kx, reload = (sKyN, sKxN, sOffN2) if kind == 'n' else (sKyC, sKxC, sOffN)
        o = v(R.off[j])
        t0, t1, t2, t3 = [v(x) for x in T[:4]]
        return [
            V('v_lshlrev_b32', t0, 16, o), V('v_and_b32', t1, 0xffff0000, o),
            [S('s_add_u32', sLd, reload, 4*j*22400), BL('buffer_load_dword', o, v(R.OffV), SO, sLd)],
            V('v_add3_u32', t2, v(R.iy), ky, 4*j), V('v_add_u32', t3, kx, v(R.ix)),
            V('v_cvt_f32_i32', t2, t2), V('v_cvt_f32_i32', t3, t3),
            V('v_add_f32', t0, t0, t2), V('v_add_f32', t1, t1, t3),
            V('v_med3_f32', t2, t2, 0, sF223), V('v_med3_f32', t3, t3, 0, sF223),
            V('v_med3_f32', t0, t0, 0, sF223), V('v_med3_f32', t1, t1, 0, sF223),
            V('v_cvt_pk_bf16_f32', t2, t2, t3), V('v_cvt_pk_bf16_f32', t0, t0, t1),
            V('v_and_b32', t1, 0xffff0000, t0), V('v_cmp_ne_u32_e64', sIrrT, t0, t2), V('v_lshlrev_b32', t0, 16, t0),
            V('v_floor_f32', v(R.X0), t1), V('v_floor_f32', v(R.Y0), t0),
            V('v_sub_f32', v(R.WX), t1, v(R.X0)), V('v_sub_f32', v(R.WY), t0, v(R.Y0)),
        ]
    def half2(s, j):
        R = s.R; T = R.T
        t0, t1, t2, t3, t4, t5 = [v(x) for x in T]
        Y0, X0, WY, WX = v(R.Y0), v(R.X0), v(R.WY), v(R.WX)
        return [
            V('v_cmp_neq_f32', 'vcc', 0, WY),
            V('v_sub_f32', t0, 1.0, WY), V('v_sub_f32', t1, 1.0, WX),
            V('v_med3_f32', t4, Y0, v(R.Ylo), sYhi), V('v_med3_f32', t5, X0, v(R.Xlo), sXhi),
            V('v_mul_f32', t2, t0, t1),
            V('v_mul_f32', t0, t0, WX),
            V('v_mul_f32', t1, WY, t1),
            V('v_mul_f32', t3, WY, WX),
            V('v_cmp_neq_f32_e64', sr(FAR+2*j, 2), t4, Y0), V('v_cmp_neq_f32_e64', sT2, t5, X0),
            V('v_fmamk_f32', t5, t5, float(PPQ), v(R.C)),
            V('v_cmp_neq_f32_e64', sr(FF+2*j, 2), 0, t3),
            V('v_fmamk_f32', t4, t4, float(RPQ), t5),
            V('v_cvt_pk_bf16_f32', v(R.w4a[j]), t2, t0), V('v_cvt_pk_bf16_f32', v(R.w4b[j]), t1, t3),
            V('v_cvt_u32_f32', t4, t4),
            V('v_cndmask_b32', t0, t0, t1), V('v_cndmask_b32', t5, PPQ, v(R.Psel)),
            S('s_or_b64', sr(FAR+2*j, 2), sr(FAR+2*j, 2), sT2),
            V('v_cvt_pk_bf16_f32', v(R.w2[j]), t2, t0), V('v_add_u32', t5, t5, t4),
            S('s_or_b64', sr(FF+2*j, 2), sr(FF+2*j, 2), sr(FAR+2*j, 2)),
            V('v_lshl_or_b32', v(R.pair[j]), t5, 16, t4),
            S('s_mov_b64', sr(IRR+2*j, 2), sIrrT),
        ]
    def params_next(s):
        return [
            S('s_add_u32', sA, sTb, sX), S('s_cmp_eq_u32', sX, 6), S('s_cselect_b32', sA, 12, sA), S('s_cselect_b32', sB, sR0, 0),
            S('s_mul_i32', sC, sA, 52), S('s_mul_i32', sWN, sA, 18432), S('s_lshr_b32', sC, sC, 8),
            S('s_mul_i32', sD, sC, 5), S('s_add_u32', sC, sC, sB), S('s_sub_u32', sD, sA, sD),
            S('s_sub_u32', sKyN, sC, 2), S('s_sub_u32', sKxN, sD, 2),
            S('s_mul_i32', sC, sC, RP), S('s_mul_i32', sD, sD, PP), S('s_add_u32', sC, sC, RP + PP), S('s_add_u32', sAN, sC, sD),
            S('s_mov_b32', sOffN, sOffN2),
        ]
    def params_n2(s):
        return [
            S('s_add_u32', sOffRun, sOffRun, 4),
            [S('s_cmp_eq_u32', sX, 5), S('s_cselect_b32', sOffN2, sOffSh, sOffRun)],
            [S('s_cmp_eq_u32', sX, 6), S('s_cselect_b32', sOffN2, BIG, sOffN2)],
        ]
    def tr_w(s, c):
        R = s.R; res = []
        for T in range(6):
            u, e = T >> 1, T & 1
            for h in range(2):
                res.append(DSR('ds_read_b64_tr_b16', v(R.Wf(c, T) + 2*h, 2), v(R.W1 if e else R.W0), c*6144 + h*1536 + 64*u, need={'Wst'}))
        return res
    def dma_w(s, i, first):
        R = s.R; allw = {f"v{k}" for k in range(R.W, R.W + 72)}
        d = DMA(v([R.D0, R.D1, R.D2][i % 3]), SW, sDm, 1024*(i % 4), res='Wst', need=allw if first else ())
        if i % 4 == 0:
            return [S('s_add_u32', 'm0', sWst, 4096*(i//4)), S('s_add_u32', sDm, sWN, 4096*(i//4)), d]
        return [d]

    def fillers(s, rho, mains, kind):
        R = s.R; mt = s.mt; ops = []
        if kind == 'pre':
            ops += [Op(i, prio=30) for i in s.tr_w(0) + s.tr_w(1)]
            return ops
        if rho == 0:
            ops += [Op(i, prio=20) for i in s.tr_w(2)]
        if kind == 'part': return ops
        if rho == 0:
            pn = s.params_next()
            pn = [pn[0], pn[1:4]] + pn[4:]
            ops += chain(pn, prio=60)
        if rho == 1: ops += chain(s.params_n2(), prio=60)
        nd = mt - 3
        if 1 <= rho <= nd:
            lo, hi = (rho-1)*18//nd, rho*18//nd
            ops += chain([s.dma_w(i, i == 0) for i in range(lo, hi)], prio=40)
        for j, (sl, kd) in s.place.items():
            if rho == sl: ops += chain(s.half1(j, kd), prio=55)
            if rho == sl + 1: ops += chain(s.half2(j), prio=55)
        if rho == mt - 2:
            ops += chain([S('s_mov_b32', sKyC, sKyN), S('s_mov_b32', sKxC, sKxN), S('s_mov_b32', sOffC, sOffN)], prio=70)
        if rho == mt - 1:
            ops += [Op(i, prio=30).after(mains[5], 0) for i in s.tr_w(0)]
            ops += [Op(i, prio=30).after(mains[11], 0) for i in s.tr_w(1)]
            ops += [Op(S('s_add_u32', sX, sX, 1), prio=70)]
        return ops

    def body(s, var, rho_acc, cur, nxt, nu, newtap, kind, rho):
        R = s.R
        mains = []
        if rho_acc is not None:
            for c in range(3):
                for T in range(6):
                    a = R.accr(rho_acc, T)
                    mains.append(Op(MF(a, v(R.Wf(c, T), 4), v(R.Xp(cur[c]), 4), a), mf=True))
        ops = s.fillers(rho, mains, kind)
        pre = []
        alias = (cur is not None and nxt is not None and nxt[2] == cur[0])
        def ndep(o, c):
            if c == 2 and alias: o.after(mains[5], 0)
            return o
        up = None
        if newtap:
            up = Op(V('v_add_u32', v(R.A0), sAN, v(R.Xr)), prio=1); ops.append(up)
        j, g = (nu >> 2, nu & 3) if nu is not None else (0, 0)
        if var == 'N':
            pass
        elif var == 'R':
            for c in range(3):
                for h in range(2):
                    o = Op(DSR('ds_read_b64', v(R.Xp(nxt[c]) + 2*h, 2), v(R.A0), nu*RP + 64*c + 16*h), prio=15 + c)
                    if up: o.after(up, 0)
                    ops.append(ndep(o, c))
        elif var in ('2', '4'):
            pa, pb, wa, wb = [v(x) for x in R.bp]
            b1 = Op(BPERM(pa, v(R.IA), v(R.pair[j]), 64*g), prio=2)
            b2 = Op(BPERM(pb, v(R.IA), v(R.pair[j]), 64*g + 4), prio=2)
            ops += [b1, b2]
            if var == '2':
                b3 = Op(BPERM(wa, v(R.IW), v(R.w2[j]), 64*g), prio=3); ops.append(b3); bw = [b3]
                a1 = chain([V('v_bfe_u32', pa, pa, v(R.Sh), 16), V('v_lshl_add_u32', pa, pa, 4, v(R.Lc))], 5, [(b1, LAT)])
                a2 = chain([V('v_bfe_u32', pb, pb, v(R.Sh), 16), V('v_lshl_add_u32', pb, pb, 4, v(R.Lc))], 5, [(b2, LAT)])
            else:
                b3 = Op(BPERM(wa, v(R.IW), v(R.w4a[j]), 64*g), prio=3)
                b4 = Op(BPERM(wb, v(R.IW), v(R.w4b[j]), 64*g), prio=3); ops += [b3, b4]; bw = [b3, b4]
                a1 = chain([V('v_and_b32', pa, 0xffff, pa), V('v_lshl_add_u32', pa, pa, 4, v(R.Lc)), V('v_mad_u32_u24', pa, v(R.Sh), PPQ, pa)], 5, [(b1, LAT)])
                a2 = chain([V('v_and_b32', pb, 0xffff, pb), V('v_lshl_add_u32', pb, pb, 4, v(R.Lc)), V('v_mad_u32_u24', pb, v(R.Sh), PPQ, pb)], 5, [(b2, LAT)])
            ops += a1 + a2
            nu_ = 1 if var == '2' else 2
            bb = []
            for u in range(nu_):
                l = [Op(V('v_cndmask_b32_e64', v(R.B + 4*u + d), 0, [wa, wb][u], sMask[d]), prio=8).after(bw[u], LAT) for d in range(4)]
                bb.append(l); ops += l
            ring = [None]*6; k = 0; cvts = {}
            for c in range(3):
                dset = R.D + 8*(c & 1)
                last = []
                for u in range(nu_):
                    for t in range(2):
                        slot = k % 6; k += 1
                        ar = R.A + 4*slot
                        rd = []
                        for h in range(2):
                            o = Op(DSR('ds_read_b64_tr_b16', v(ar + 2*h, 2), [pa, pb][h], 64*c + 16*t + u*RP), prio=6)
                            o.after([a1, a2][h][-1], 4)
                            if ring[slot]: o.after(ring[slot], 0)
                            rd.append(o)
                        ops += rd
                        dd = v(dset + 4*t, 4)
                        im = Op(MF(dd, v(ar, 4), v(R.B + 4*u, 4), 0 if u == 0 else dd), mf=True, prio=k)
                        for o in rd: im.after(o, LAT)
                        for o in bb[u]: im.after(o, 12)
                        if u == 1: im.after(last[t], 16)
                        if u == 0 and c == 2:
                            for o in cvts[0]: im.after(o, 4)
                        ring[slot] = im; ops.append(im)
                        if u == 0: last.append(im)
                        else: last[t] = im
                cv = []
                for q in range(4):
                    t = q >> 1
                    o = Op(V('v_cvt_pk_bf16_f32', v(R.Xp(nxt[c]) + q), v(dset + 2*q), v(dset + 2*q + 1)), prio=7).after(last[t], 52)
                    cv.append(ndep(o, c))
                cvts[c] = cv; ops += cv
        elif var == 'F':
            pre = [S('s_add_u32', sFarY, sKyC, nu), S('s_add_u32', sFarO, sOffC, nu*22400), RAW(f"s_call_b64 {sRet}, {s.L('far')}")]
            for q in range(12):
                ops.append(ndep(Op(V('v_mov_b32', v(R.Xp(nxt[q >> 2]) + (q & 3)), v(R.D + q)), prio=12), q >> 2))
        ins, cyc = schedule(mains, ops, pre=4, lastcap=0)
        return pre + ins, cyc

    def fld(s, base, nu):
        j, g = nu >> 2, nu & 3
        return S('s_and_b32', sH, f"s{base + 2*j + (g >> 1)}", 0xffff0000 if g & 1 else 0xffff)

    def slots(s, name, descr, entry, endR, end2, kind):
        lineR, line2, slow = [], [], []
        st = entry
        n = len(descr)
        for idx, (rho, ra, cur, nxt, nu, newtap) in enumerate(descr):
            lab = lambda x, k=idx: s.L(f"{name}{x}{k}")
            outs = []
            def gen(var):
                a = Asm(); a.st = st.copy()
                ins, cyc = s.body(var, ra, cur, nxt, nu, newtap, kind, rho)
                a.emit(ins); outs.append(a.st)
                s.stats.append((name, idx, var, cyc, a.nops, a.n))
                return a.out
            if nu is None:
                lineR.append(lab('R') + ':'); lineR.append(lab('H') + ':')
                lineR += gen('N')
                line2.append(f"s_branch {lab('R')}")
                st = State.merge(outs)
                continue
            lineR += [lab('R') + ':', s.fld(IRR, nu).t, f"s_cbranch_scc1 {lab('H')}", lab('Rb') + ':'] + gen('R')
            line2 += [lab('H') + ':', s.fld(FF, nu).t, f"s_cbranch_scc1 {lab('S')}", s.fld(IRR, nu).t, f"s_cbranch_scc0 {lab('Rb')}"] + gen('2')
            nl = s.L(f"{name}H{idx+1}") if idx + 1 < n else s.L(f"{name}E2")
            slow += [lab('S') + ':', s.fld(FAR, nu).t, f"s_cbranch_scc1 {lab('F')}"] + gen('4') + [f"s_branch {nl}"]
            slow += [lab('F') + ':'] + gen('F') + [f"s_branch {nl}"]
            st = State.merge(outs)
        return lineR + endR, line2 + [s.L(f"{name}E2") + ':'] + end2, slow, st

    def far_sub(s):
        R = s.R; a = Asm()
        a.label(s.L('far'))
        acc = R.A; Lr = R.D
        t = [R.D + 12 + i for i in range(4)] + [R.B + i for i in range(8)] + list(R.bp)
        t = [v(x) for x in t]
        o, py, px, y0, x0, wy, wx, lp, c00, c01, c10, c11, iy1, ix1, adr, tt = t
        e = a.emit
        e(V('v_mul_u32_u24', adr, 25, v(R.IW)))
        e(BL('buffer_load_dword', o, adr, SO, sFarO))
        e(S('s_add_u32', sFarY, sFarY, sH0))
        e(V('v_mul_u32_u24', lp, 52, v(R.IW))); e(V('v_sub_u32', lp, v(R.Xr), lp))
        e(V('v_cvt_f32_i32', y0, sFarY)); e(V('v_add_u32', x0, sKxC, v(R.ix))); e(V('v_cvt_f32_i32', x0, x0))
        e(V('v_lshlrev_b32', py, 16, o)); e(V('v_and_b32', px, 0xffff0000, o))
        e(V('v_add_f32', py, py, y0)); e(V('v_add_f32', px, px, x0))
        e(V('v_med3_f32', py, py, 0, sF223)); e(V('v_med3_f32', px, px, 0, sF223))
        e(V('v_cvt_pk_bf16_f32', o, py, px))
        e(V('v_lshlrev_b32', py, 16, o)); e(V('v_and_b32', px, 0xffff0000, o))
        e(V('v_floor_f32', y0, py)); e(V('v_floor_f32', x0, px))
        e(V('v_sub_f32', wy, py, y0)); e(V('v_sub_f32', wx, px, x0))
        e(V('v_sub_f32', py, 1.0, wy)); e(V('v_sub_f32', px, 1.0, wx))
        e(V('v_mul_f32', c00, py, px)); e(V('v_mul_f32', c01, py, wx)); e(V('v_mul_f32', c10, wy, px)); e(V('v_mul_f32', c11, wy, wx))
        e(V('v_cvt_u32_f32', y0, y0)); e(V('v_cvt_u32_f32', x0, x0))
        e(V('v_add_u32', iy1, 1, y0)); e(V('v_add_u32', ix1, 1, x0))
        e(V('v_min_u32', iy1, 223, iy1)); e(V('v_min_u32', ix1, 223, ix1))
        e(V('v_mul_u32_u24', y0, 43008, y0)); e(V('v_mul_u32_u24', iy1, 43008, iy1))
        e(V('v_mul_u32_u24', x0, 192, x0)); e(V('v_mul_u32_u24', ix1, 192, ix1))
        for k, (yy, xx, w) in enumerate([(y0, x0, c00), (y0, ix1, c01), (iy1, x0, c10), (iy1, ix1, c11)]):
            e(V('v_add3_u32', adr, yy, xx, lp))
            for c in range(3):
                for h in range(2):
                    e(BL('buffer_load_dwordx2', v(Lr + 4*c + 2*h, 2), adr, SX, 0, 64*c + 16*h))
            for d in range(12):
                e(V('v_lshlrev_b32', tt, 16, v(Lr + d)))
                e(V('v_mul_f32' if k == 0 else 'v_fmac_f32', v(acc + 2*d), w, tt))
                e(V('v_and_b32', tt, 0xffff0000, v(Lr + d)))
                e(V('v_mul_f32' if k == 0 else 'v_fmac_f32', v(acc + 2*d + 1), w, tt))
        for d in range(12):
            e(V('v_cvt_pk_bf16_f32', v(Lr + d), v(acc + 2*d), v(acc + 2*d + 1)))
        a.line(f"s_setpc_b64 {sRet}")
        return a.out

    def epilogue(s, w, st):
        R = s.R; mt = s.mt; a = Asm(); a.st = st.copy(); e = a.emit
        E = [v(R.T[0]), v(R.T[1]), v(R.T[2])]; vo = v(R.T[3]); ln = v(R.T[4])
        e(V('v_mbcnt_lo_u32_b32', ln, -1, 0)); e(V('v_mbcnt_hi_u32_b32', ln, -1, ln))
        e(V('v_lshlrev_b32', E[0], 4, ln)); e(V('v_add_u32', E[1], 0x10000, E[0])); e(V('v_add_u32', E[2], 0x20000, E[0]))
        e(V('v_lshrrev_b32', ln, 4, ln)); e(V('v_mul_u32_u24', vo, 48, v(R.IW))); e(V('v_lshl_add_u32', vo, ln, 4, vo))
        def ad(k): return E[k >> 6], (k & 63)*1024
        rounds = [list(range(b, min(b + 8, mt))) for b in range(0, mt, 8)]
        for ri, rows in enumerate(rounds):
            a.wait(lg=0); a.line("s_barrier")
            for r in rows:
                ow = r & 3
                if ow == w: continue
                kk = (w - ow - 1) & 3
                for T in range(6):
                    b, o = ad((r - rows[0])*18 + kk*6 + T)
                    e(DSW('ds_write_b128', b, R.accr(r, T), o))
            a.wait(lg=0); a.line("s_barrier")
            own = [r for r in rows if (r & 3) == w]
            for r in own:
                P = R.W
                for T in range(6):
                    for kk in range(3):
                        b, o = ad((r - rows[0])*18 + kk*6 + T)
                        e(DSR('ds_read_b128', v(P + (T*3 + kk)*4, 4), b, o))
                e(S('s_add_u32', sA, sOutB, r*43008))
                Q = R.A
                for T in range(6):
                    for i in range(4):
                        ar = R.accr(r, T, 1, i); q = v(Q + 4*T + i)
                        p0, p1, p2 = [v(P + (T*3 + kk)*4 + i) for kk in range(3)]
                        if ar[0] == 'a':
                            e(V('v_accvgpr_read_b32', q, ar)); ar = q
                        e(V('v_add_f32', p1, p1, p2)); e(V('v_add_f32', q, ar, p0)); e(V('v_add_f32', q, q, p1))
                Z = R.D; O = R.X
                for T in range(6):
                    e(V('v_cvt_pk_bf16_f32', v(Z + 2*T), v(Q + 4*T), v(Q + 4*T + 1)))
                    e(V('v_cvt_pk_bf16_f32', v(Z + 2*T + 1), v(Q + 4*T + 2), v(Q + 4*T + 3)))
                for u in range(3):
                    for q in range(4):
                        e(V('v_cndmask_b32_e64', v(O + 4*u + q), v(Z + 4*u + q), v(Z + 4*u + (q ^ 2)), sOdd))
                a.line(f"s_cmp_le_u32 {sNv}, {r}"); a.line(f"s_cbranch_scc1 {s.L(f'sk{w}_{r}')}")
                sv = a.st.copy()
                for u in range(3):
                    e(BS('buffer_store_dwordx4', v(O + 4*u, 4), vo, SOUT, sA, 64*u))
                a.label(s.L(f'sk{w}_{r}'))
                a.st = State.merge([sv, a.st])
        a.line("s_endpgm")
        return a.out

    def prologue(s):
        R = s.R; mt = s.mt; a = Asm(); e = a.emit
        a.label(s.L('start'))
        ln, n_, g_, r_, c_, t0, t1, t2 = [v(R.D + i) for i in range(8)]
        e(V('v_and_b32', ln, 63, 'v0'))
        e(V('v_and_b32', n_, 15, ln)); e(V('v_lshrrev_b32', g_, 4, ln)); e(V('v_bfe_u32', r_, ln, 2, 2)); e(V('v_and_b32', c_, 3, ln))
        e(V('v_mul_u32_u24', t0, 22400, g_)); e(V('v_mul_u32_u24', t1, 100, n_)); e(V('v_add_u32', v(R.OffV), t0, t1))
        e(S('s_mul_i32', sA, sH0, 224)); e(S('s_add_u32', sA, sA, sW0))
        e(S('s_mul_i32', sOutB, sA, 192)); e(S('s_mul_i32', sA, sA, 100))
        e(S('s_mul_i32', sTb, sWave, 6)); e(S('s_cmp_ge_u32', sWave, 2)); e(S('s_addc_u32', sTb, sTb, 0))
        e(S('s_mov_b32', sR0, s.r0[0]))
        for w in range(1, 4):
            e(S('s_cmp_eq_u32', sWave, w)); e(S('s_cselect_b32', sR0, s.r0[w], sR0))
        e(S('s_mul_i32', sOffSh, sR0, 22400)); e(S('s_add_u32', sOffSh, sOffSh, sA)); e(S('s_add_u32', sOffSh, sOffSh, 48))
        e(S('s_lshl_b32', sOffRun, sTb, 2)); e(S('s_add_u32', sOffRun, sOffRun, sA))
        e(S('s_mov_b32', sOffN2, sOffRun)); e(S('s_mov_b32', sX, 0))
        e(s.params_next())
        for j in range(R.ng):
            e(S('s_add_u32', sLd, sOffN, 4*j*22400)); e(BL('buffer_load_dword', v(R.off[j]), v(R.OffV), SO, sLd))
        e(s.params_n2())
        e(S('s_mov_b32', sX, 1))
        e(S('s_mov_b32', sKyC, sKyN)); e(S('s_mov_b32', sKxC, sKxN)); e(S('s_mov_b32', sOffC, sOffN))
        e(S('s_mul_i32', sWst, sWave, 18432)); e(S('s_add_u32', sWst, sWst, WST0))
        e(V('v_cmp_le_u32', 'vcc', 48, ln)); e(V('v_xor_b32', t0, 1, ln)); e(V('v_lshlrev_b32', t1, 4, ln)); e(V('v_lshlrev_b32', t0, 4, t0))
        e(V('v_cndmask_b32', v(R.D0), t1, t0))
        e(V('v_cmp_gt_u32', 'vcc', 32, ln)); e(V('v_and_b32', t2, 1, g_)); e(V('v_lshrrev_b32', v(R.Sh), 1, g_))
        e(V('v_cndmask_b32', v(R.D1), t1, t0))
        e(V('v_cmp_le_u32', 'vcc', 16, ln)); e(V('v_lshlrev_b32', v(R.Xr), 3, t2)); e(V('v_lshl_add_u32', v(R.Xr), v(R.Sh), 5, v(R.Xr)))
        e(V('v_cndmask_b32', v(R.D2), t1, t0))
        for i in range(18): e(s.dma_w(i, False))
        VO = [v(R.A + i) for i in range(5)]
        e(S('s_sub_u32', sB, sW0, 3))
        e(S('s_mov_b32', sC, BIG))
        for i in range(5):
            e(V('v_add_u32', t0, 64*i, ln)); e(V('v_mul_u32_u24', t1, 5042, t0)); e(V('v_lshrrev_b32', t1, 16, t1))
            e(V('v_mul_u32_u24', VO[i], 13, t1)); e(V('v_sub_u32', t0, t0, VO[i]))
            e(V('v_add_u32', t1, sB, t1)); e(V('v_max_i32', t1, 0, t1)); e(V('v_min_i32', t1, 223, t1))
            e(V('v_cmp_eq_u32', 'vcc', 12, t0))
            e(V('v_mul_u32_u24', t1, 192, t1)); e(V('v_lshl_add_u32', t1, t0, 4, t1)); e(V('v_mov_b32', t0, sC))
            e(V('v_cndmask_b32', VO[i], t1, t0))
        nrow = mt + 6
        nr = (nrow + 3)//4
        rowS = [f"s{36+k}" for k in range(nr)]; rowM = [f"s{44+k}" for k in range(nr)]
        e(S('s_sub_u32', sB, sH0, 3)); e(S('s_add_u32', sB, sB, sWave))
        for k in range(nr):
            e(S('s_add_u32', sC, sB, 4*k)); e(S('s_max_i32', sC, sC, 0)); e(S('s_min_i32', sC, sC, 223)); e(S('s_mul_i32', rowS[k], sC, 43008))
            e(S('s_add_u32', sC, sWave, 4*k)); e(S('s_mul_i32', rowM[k], sC, RP))
        def rows(iset):
            for k in range(nr):
                skip = 4*k + 3 >= nrow
                if skip:
                    a.line(f"s_cmp_ge_u32 {sWave}, {nrow - 4*k}"); a.line(f"s_cbranch_scc1 {s.L(f'ws{iset[0]}')}")
                for i in iset:
                    e(S('s_add_u32', 'm0', rowM[k], 1024*i)); e(DMA(VO[i], SX, rowS[k], 0, res='win'))
                if skip: a.label(s.L(f'ws{iset[0]}'))
        rows([0, 1, 2, 3])
        e(S('s_mov_b64', 'exec', (1 << 30) - 1))
        rows([4])
        e(S('s_mov_b64', 'exec', -1))
        a.st.vm = {k: min(x, 18) for k, x in a.st.vm.items()}
        e(V('v_mad_u32_u24', v(R.Xr), n_, v_const(a, t0, PP), v(R.Xr)))
        e(V('v_lshlrev_b32', v(R.IW), 2, n_))
        e(V('v_lshlrev_b32', t0, 4, v(R.Sh))); e(V('v_lshl_add_u32', t0, t2, 2, t0)); e(V('v_add_u32', t0, t0, r_)); e(V('v_mul_u32_u24', t0, 192, t0))
        e(V('v_xor_b32', t1, c_, t2)); e(V('v_lshl_add_u32', t0, t1, 4, t0)); e(V('v_add_u32', t0, sWst, t0))
        e(V('v_and_b32', t1, 1, c_)); e(V('v_lshl_add_u32', v(R.W0), t1, 3, t0)); e(V('v_xor_b32', v(R.W1), 8, v(R.W0)))
        e(V('v_lshlrev_b32', v(R.Lc), 3, t1)); e(V('v_lshrrev_b32', t1, 1, c_)); e(V('v_lshl_add_u32', v(R.Lc), t1, 5, v(R.Lc)))
        e(V('v_lshlrev_b32', v(R.IA), 4, t2)); e(V('v_lshl_add_u32', v(R.IA), v(R.Sh), 3, v(R.IA)))
        e(V('v_lshrrev_b32', t1, 1, r_)); e(V('v_lshl_add_u32', v(R.IA), t1, 5, v(R.IA)))
        e(V('v_and_b32', t1, 1, r_)); e(V('v_lshlrev_b32', v(R.Sh), 4, t1))
        e(V('v_add_u32', v(R.iy), sH0, g_)); e(V('v_add_u32', v(R.ix), sW0, n_))
        e(S('s_sub_u32', sB, sH0, 3)); e(S('s_sub_u32', sC, sW0, 3))
        e(V('v_cvt_f32_i32', v(R.Ylo), sB)); e(V('v_cvt_f32_i32', v(R.Xlo), sC))
        e(V('v_add_f32', t0, float(mt + 4), v(R.Ylo))); e(V('v_add_f32', t1, 20.0, v(R.Xlo)))
        e(V('v_mul_f32', v(R.C), float(-PPQ), v(R.Xlo))); e(V('v_fmamk_f32', v(R.C), v(R.Ylo), float(-RPQ), v(R.C)))
        e(V('v_readfirstlane_b32', sYhi, t0)); e(V('v_readfirstlane_b32', sXhi, t1))
        e(V('v_mov_b32', v(R.Psel), RPQ)); e(S('s_mov_b32', sF223, 223.0))
        pm = lambda g, h, j: (g & 1)*4 + (g >> 1)*2 + h + 8*j
        for d in range(4):
            m = sum(1 << (16*g + pm(g, d >> 1, d & 1)) for g in range(4))
            e(S('s_mov_b32', f"s{26+2*d}", m & 0xffffffff)); e(S('s_mov_b32', f"s{27+2*d}", m >> 32))
        e(S('s_mov_b32', 's34', 0xffff0000)); e(S('s_mov_b32', 's35', 0xffff0000))
        for r in range(mt):
            for T in range(6):
                for i in range(4):
                    x = R.accr(r, T, 1, i)
                    e(V('v_accvgpr_write_b32' if x[0] == 'a' else 'v_mov_b32', x, 0))
        for j, (sl, kd) in s.place.items():
            if kd == 'n':
                e(s.half1(j, 'n')); e(s.half2(j))
        a.wait(vm=0); a.line("s_barrier")
        return a.out, a.st

    def gen(s):
        mt = s.mt; pool = s.pool
        out, st = s.prologue()
        lr, l2, sl, st0 = s.slots('q', [(None, None, None, pool[0], 0, True)], st, [f"s_branch {s.L('mR0')}"], [f"s_branch {s.L('mH0')}"], 'pre')
        pre = lr + l2 + sl
        descr = [(r, r, pool[r], pool[(r+1) % mt], (r+1) % mt, r == mt-1) for r in range(mt)]
        entry = st0
        endR = [f"s_cmp_lt_u32 {sX}, 7", f"s_cbranch_scc1 {s.L('mR0')}", f"s_branch {s.L('part')}"]
        end2 = [f"s_cmp_lt_u32 {sX}, 7", f"s_cbranch_scc1 {s.L('mH0')}", f"s_branch {s.L('part')}"]
        keep = len(s.stats)
        for it in range(5):
            del s.stats[keep:]
            lr, l2, sl, ex = s.slots('m', descr, entry, endR, end2, 'loop')
            if entry.covers(ex): break
            entry = State.merge([entry, ex])
        else: assert False
        out += pre + ['.p2align 6'] + lr + l2 + sl
        out.append(s.L('part') + ':')
        for w in range(1, 4):
            out += [f"s_cmp_eq_u32 {sWave}, {w}", f"s_cbranch_scc1 {s.L(f'p{w}R0')}"]
        for w in range(4):
            n = s.rsz[w]; pl = solve_pool(n, closed=False)
            d = [(k, s.r0[w] + k, pl[k], pl[k+1] if k+1 < n else None, k+1 if k+1 < n else None, False) for k in range(n)]
            lr, l2, sl, e2 = s.slots(f'p{w}', d, ex, [], [], 'part')
            out += lr + s.epilogue(w, e2) + l2 + sl
        out += s.far_sub()
        return out

def v_const(a, tmp, val):
    a.emit(V('v_mov_b32', tmp, val)); return tmp

def decode(classes, variants):
    a = Asm(); e = a.emit
    sT, sI = sA, sB
    e(S('s_and_b32', sT, 's2', 7)); e(S('s_lshl_b32', sT, sT, 5)); e(S('s_lshr_b32', sC, 's2', 3)); e(S('s_add_u32', sT, sT, sC))
    for ci, (t0, ns, tps, st0, segs) in enumerate(classes):
        a.label(f"Lc{ci}")
        if ci + 1 < len(classes):
            a.line(f"s_cmp_ge_u32 {sT}, {classes[ci+1][0]}"); a.line(f"s_cbranch_scc1 Lc{ci+1}")
        else:
            a.line(f"s_cmp_ge_u32 {sT}, {t0 + ns*tps}"); a.line("s_cbranch_scc1 Lexit")
        e(S('s_sub_u32', sI, sT, t0))
        if ns > 1:
            mul = (65536 + tps - 1)//tps
            assert all((x*mul) >> 16 == x//tps for x in range(ns*tps))
            e(S('s_mul_i32', sC, sI, mul)); e(S('s_lshr_b32', sC, sC, 16)); e(S('s_mul_i32', sD, sC, tps)); e(S('s_sub_u32', sI, sI, sD))
            e(S('s_add_u32', sC, sC, st0)); e(S('s_lshl_b32', sW0, sC, 4))
        else:
            e(S('s_mov_b32', sW0, st0*16))
        i0, r0, step, var = segs[0]
        e(S('s_mov_b32', sH0, r0 - i0*step)); e(S('s_mov_b32', sNv, step)); e(S('s_mov_b32', sVar, var))
        for (i0, r0, step, var) in segs[1:]:
            e(S('s_cmp_ge_u32', sI, i0)); e(S('s_cselect_b32', sH0, r0 - i0*step, sH0)); e(S('s_cselect_b32', sNv, step, sNv)); e(S('s_cselect_b32', sVar, var, sVar))
        a.line("s_branch Ldec")
    a.label("Ldec")
    e(S('s_mul_i32', sC, sI, sNv)); e(S('s_add_u32', sH0, sH0, sC))
    e(S('s_sub_u32', sC, 224, sH0)); e(S('s_min_u32', sNv, sNv, sC))
    return a.out

def check_plan(classes, mts):
    cover = [[0]*224 for _ in range(14)]
    tot = 0
    for (t0, ns, tps, st0, segs) in classes:
        assert t0 == tot; tot += ns*tps
        for sidx in range(st0, st0 + ns):
            for i in range(tps):
                sg = [x for x in segs if x[0] <= i][-1]
                h0 = sg[1] + (i - sg[0])*sg[2]; nv = min(sg[2], 224 - h0)
                assert 0 <= h0 < 224 and nv <= mts[sg[3]], (h0, nv)
                for r in range(h0, h0 + nv): cover[sidx][r] += 1
    assert all(c == 1 for row in cover for c in row)
    return tot

def main():
    ap = argparse.ArgumentParser()
    ap.add_argument('-o', default='standalone__deformable_dcnv1__vision.s')
    ap.add_argument('--plan', default='u13')
    ap.add_argument('-v', action='store_true')
    args = ap.parse_args()
    if args.plan == 'u13':
        mts = [13]; classes = [(0, 14, 18, 0, [(0, 0, 13, 0)])]
    elif args.plan == 'u8':
        mts = [8]; classes = [(0, 14, 28, 0, [(0, 0, 8, 0)])]
    ntile = check_plan(classes, mts)
    nwg = (ntile + 31)//32*32 if ntile <= 256 else None
    assert ntile <= 256
    nwg = 256
    L = [f"; @launch grid=({nwg},1,1) block=(256,1,1) lds=163840",
         '.amdgcn_target "amdgcn-amd-amdhsa--gfx950"', '.text', f'.globl {NAME}', '.p2align 8', f'.type {NAME},@function', f'{NAME}:']
    L += [f"s_cmp_ge_u32 s2, {nwg}", "s_cbranch_scc1 Lexit",
          "s_load_dwordx2 s[4:5], s[0:1], 0", "s_load_dwordx2 s[8:9], s[0:1], 8", "s_load_dwordx2 s[12:13], s[0:1], 16", "s_load_dwordx2 s[16:17], s[0:1], 24",
          "v_lshrrev_b32 v1, 6, v0", "s_nop 0", f"v_readfirstlane_b32 {sWave}, v1"]
    L += decode(classes, mts)
    L += ["s_waitcnt lgkmcnt(0)"]
    for b, nrec in ((4, 9633792), (8, 5017600), (12, 460800), (16, 9633792)):
        L += [f"s_and_b32 s{b+1}, s{b+1}, 0xffff", f"s_mov_b32 s{b+2}, {nrec}", f"s_mov_b32 s{b+3}, 0x20000"]
    engines = [Mixed(mt, f"m{mt}") for mt in mts]
    for k, en in enumerate(engines[1:], 1):
        L += [f"s_cmp_eq_u32 {sVar}, {k}", f"s_cbranch_scc1 {en.L('start')}"]
    for en in engines:
        L += en.gen()
        if args.v:
            for st in en.stats: print(en.tag, st)
            print("vgprs", en.R.n)
    L += ["Lexit:", "s_endpgm"]
    L += ['.section .rodata,"a"', '.p2align 6', f'.amdhsa_kernel {NAME}']
    for x in ["next_free_vgpr 512", "next_free_sgpr 102", "accum_offset 256", "group_segment_fixed_size 0", "kernarg_size 48", "user_sgpr_count 2",
              "user_sgpr_kernarg_segment_ptr 1", "system_sgpr_workgroup_id_x 1"]:
        L.append("  .amdhsa_" + x)
    L.append(".end_amdhsa_kernel")
    open(args.o, 'w').write('\n'.join(L) + '\n')
    print("lines", len(L), "bytes", sum(len(x) + 1 for x in L))
main()
```

```python
import sys, argparse, itertools
from asmlib import *

NAME = "standalone__deformable_dcnv1__vision_kernel"
H = Wd = 224
PP = 208; PPQ = 13
RPQ = 291; RP = RPQ*16
WST0 = 163840 - 4*18432
LAT = 120

SX, SO, SW, SOUT = sr(4,4), sr(8,4), sr(12,4), sr(16,4)
sWave, sH0, sW0, sNv, sVar = 's20', 's21', 's22', 's23', 's24'
sMask = [sr(26+2*d, 2) for d in range(4)]
sOdd = sr(34,2)
IRR, FF, FAR = 36, 44, 52
sIrrT = sr(60,2); sT2 = sr(62,2)
sKyC, sKxC, sOffC, sKyN, sKxN, sOffN, sAN, sWN, sOffN2, sWst = [f"s{i}" for i in range(64,74)]
sF223, sYhi, sXhi, sOffRun, sTb, sR0, sX = [f"s{i}" for i in range(74,81)]
sA, sB, sC, sD, sE, sF = [f"s{i}" for i in range(81,87)]
sH = 's87'
sRet = sr(88,2); sFarY = 's90'; sFarO = 's91'; sDm = 's92'; sOutB = 's93'; sOffSh = 's94'; sLd = 's95'
BIG = 0x40000000
PROF = False
STAMP = ['s3', 's25', 's96', 's97', 's98', 's99']
def stamp(k):
    if not PROF: return []
    L = ["s_memrealtime s[100:101]", "s_waitcnt lgkmcnt(0)", f"s_mov_b32 {STAMP[k]}, s100"]
    if k == 2: L += ["s_memtime s[100:101]", "s_waitcnt lgkmcnt(0)", "s_mov_b32 s24, s100"]
    if k == 3: L += ["s_memtime s[100:101]", "s_waitcnt lgkmcnt(0)", "s_sub_u32 s24, s100, s24"]
    return L
def prof_out():
    if not PROF: return []
    L = stamp(5)
    L += ["s_load_dwordx4 s[4:7], s[0:1], 32", "s_waitcnt lgkmcnt(0)", "s_mov_b32 s8, s6", "s_and_b32 s9, s7, 0xffff", "s_mov_b32 s10, 0x100000", "s_mov_b32 s11, 0x20000",
          "s_and_b32 s5, s5, 0xffff", "s_mov_b32 s6, 256", "s_mov_b32 s7, 0x20000",
          f"s_lshl_b32 s12, s2, 2", f"s_add_u32 s12, s12, {sWave}", "s_lshl_b32 s12, s12, 5", "v_mov_b32 v0, 0", "s_mov_b64 exec, 1"]
    for k in range(6):
        L += [f"v_mov_b32 v1, {STAMP[k]}", f"buffer_store_dword v1, v0, s[8:11], s12 offen offset:{4*k}"]
    L += [f"v_mov_b32 v1, {sH0}", f"v_lshl_or_b32 v1, v1, 16, {sW0}", "buffer_store_dword v1, v0, s[8:11], s12 offen offset:24"]
    L += [f"v_mov_b32 v1, s24", "buffer_store_dword v1, v0, s[8:11], s12 offen offset:28"]
    if PROF < 2: return L + ["s_waitcnt vmcnt(0)"]
    if PROF == 3:
        L += ["s_mov_b32 s13, 0x1000", "s_cmp_eq_u32 s12, 0", "s_cselect_b32 s13, 0, s13", f"s_cmp_eq_u32 s12, {100*128}", "s_cselect_b32 s13, 32, s13"]
        for k in range(6):
            L += [f"v_mov_b32 v1, {STAMP[k]}", f"buffer_store_dword v1, v0, s[4:7], s13 offen offset:{4*k}"]
        L += [f"v_mov_b32 v1, s24", "buffer_store_dword v1, v0, s[4:7], s13 offen offset:28"]
        return L + ["s_waitcnt vmcnt(0)"]
    L += [f"s_not_b32 s13, {STAMP[0]}", "v_mov_b32 v1, s13", "buffer_atomic_umax v1, v0, s[4:7], 0 offen offset:0"]
    L += [f"v_mov_b32 v2, {STAMP[0]}", "buffer_atomic_umax v2, v0, s[4:7], 0 offen offset:4"]
    L += [f"v_mov_b32 v3, {STAMP[5]}", "buffer_atomic_umax v3, v0, s[4:7], 0 offen offset:8"]
    for k in range(5):
        L += [f"s_sub_u32 s13, {STAMP[k+1]}, {STAMP[k]}", f"v_mov_b32 v{4+k}, s13", f"buffer_atomic_umax v{4+k}, v0, s[4:7], 0 offen offset:{12+4*k}",
              f"buffer_atomic_add v{4+k}, v0, s[4:7], 0 offen offset:{32+4*k}"]
    L += ["s_waitcnt vmcnt(0)"]
    return L

class Regs:
    def __init__(s, mt):
        s.n = 0
        al = s.alloc
        (s.Xr, s.W0, s.W1, s.D0, s.D1, s.D2, s.IA, s.IW, s.Sh, s.Lc, s.iy, s.ix, s.OffV, s.Ylo, s.Xlo, s.C, s.Psel, s.A0) = [al(1) for _ in range(18)]
        s.ng = (mt + 3)//4
        s.off = [al(1) for _ in range(s.ng)]
        s.pair = [al(1) for _ in range(s.ng)]
        s.w2 = [al(1) for _ in range(s.ng)]
        s.w4a = [al(1) for _ in range(s.ng)]
        s.w4b = [al(1) for _ in range(s.ng)]
        s.Y0, s.X0, s.WY, s.WX = [al(1) for _ in range(4)]
        s.T = [al(1) for _ in range(6)]
        s.bp = [al(1) for _ in range(4)]
        s.X = al(24, 4); s.A = al(24, 4); s.D = al(16, 4); s.B = al(8, 4); s.W = al(72, 4)
        nacc = max(0, mt*24 - 256)
        s.acc = al(nacc, 4) if nacc else None
        assert s.n <= 256, s.n
    def alloc(s, n, align=1):
        s.n = (s.n + align - 1)//align*align
        b = s.n; s.n += n
        return b
    def accr(s, r, T, n=4, i=0):
        k = (r*6 + T)*4 + i
        return vr(k, n, 'a') if k < 256 else vr(s.acc + k - 256, n)
    def Wf(s, c, T): return s.W + (c*6 + T)*4
    def Xp(s, p): return s.X + 4*p
v = lambda r, n=1: vr(r, n)

def solve_pool(n, P=6, closed=True):
    start = (0, 1, 2)
    def nxt(c):
        res = []
        for a, b in itertools.permutations([x for x in range(P) if x not in c], 2):
            for d in range(P):
                if d in (c[1], c[2], a, b): continue
                res.append((a, b, d))
        res.sort(key=lambda t: t[2] == c[0])
        return res
    def ok(c, nn): return nn[0] not in c and nn[1] not in c and nn[2] not in (c[1], c[2])
    def rec(seq):
        if len(seq) == n:
            return seq if (not closed or ok(seq[-1], start)) else None
        for x in nxt(seq[-1]):
            r = rec(seq + [x])
            if r: return r
        return None
    r = rec([start]); assert r
    return r

def chain(inss, prio=50, first_deps=(), name=''):
    ops = []; prev = None
    for i in inss:
        o = Op(i, prio=prio, name=name)
        if prev is not None: o.after(prev, 0)
        else:
            for d in first_deps: o.after(*d)
        ops.append(o); prev = o
    return ops

class Mixed:
    def __init__(s, mt, tag):
        s.mt = mt; s.tag = tag; s.R = Regs(mt)
        s.pool = solve_pool(mt)
        ng = s.R.ng
        s.place = {}
        if mt >= 13: s.place = {0: (3, 'n'), 1: (7, 'n'), 2: (10, 'n'), 3: (1, 'c')}
        elif mt >= 9: s.place = {0: (3, 'n'), 1: (6, 'n'), 2: (1, 'c')}
        else: s.place = {0: (3, 'n'), 1: (1, 'c')}
        assert len(s.place) == ng and mt >= 6
        q, rem = divmod(mt, 4)
        sz = [q + (1 if w < rem else 0) for w in range(4)]
        s.r0 = [sum(sz[:w]) for w in range(4)]; s.rsz = sz
        s.stats = []
    def L(s, x): return f"L{s.tag}_{x}"

    def half1(s, j, kind):
        R = s.R; T = R.T
        ky, kx, reload = (sKyN, sKxN, sOffN2) if kind == 'n' else (sKyC, sKxC, sOffN)
        o = v(R.off[j])
        t0, t1, t2, t3 = [v(x) for x in T[:4]]
        return [
            V('v_lshlrev_b32', t0, 16, o), V('v_and_b32', t1, 0xffff0000, o),
            [S('s_add_u32', sLd, reload, 4*j*22400), BL('buffer_load_dword', o, v(R.OffV), SO, sLd)],
            V('v_add3_u32', t2, v(R.iy), ky, 4*j), V('v_add_u32', t3, kx, v(R.ix)),
            V('v_cvt_f32_i32', t2, t2), V('v_cvt_f32_i32', t3, t3),
            V('v_add_f32', t0, t0, t2), V('v_add_f32', t1, t1, t3),
            V('v_med3_f32', t2, t2, 0, sF223), V('v_med3_f32', t3, t3, 0, sF223),
            V('v_med3_f32', t0, t0, 0, sF223), V('v_med3_f32', t1, t1, 0, sF223),
            V('v_cvt_pk_bf16_f32', t2, t2, t3), V('v_cvt_pk_bf16_f32', t0, t0, t1),
            V('v_and_b32', t1, 0xffff0000, t0), V('v_cmp_ne_u32_e64', sIrrT, t0, t2), V('v_lshlrev_b32', t0, 16, t0),
            V('v_floor_f32', v(R.X0), t1), V('v_floor_f32', v(R.Y0), t0),
            V('v_sub_f32', v(R.WX), t1, v(R.X0)), V('v_sub_f32', v(R.WY), t0, v(R.Y0)),
        ]
    def half2(s, j):
        R = s.R; T = R.T
        t0, t1, t2, t3, t4, t5 = [v(x) for x in T]
        Y0, X0, WY, WX = v(R.Y0), v(R.X0), v(R.WY), v(R.WX)
        return [
            V('v_cmp_neq_f32', 'vcc', 0, WY),
            V('v_sub_f32', t0, 1.0, WY), V('v_sub_f32', t1, 1.0, WX),
            V('v_med3_f32', t4, Y0, v(R.Ylo), sYhi), V('v_med3_f32', t5, X0, v(R.Xlo), sXhi),
            V('v_mul_f32', t2, t0, t1),
            V('v_mul_f32', t0, t0, WX),
            V('v_mul_f32', t1, WY, t1),
            V('v_mul_f32', t3, WY, WX),
            V('v_cmp_neq_f32_e64', sr(FAR+2*j, 2), t4, Y0), V('v_cmp_neq_f32_e64', sT2, t5, X0),
            V('v_fmamk_f32', t5, t5, float(PPQ), v(R.C)),
            V('v_cmp_neq_f32_e64', sr(FF+2*j, 2), 0, t3),
            V('v_fmamk_f32', t4, t4, float(RPQ), t5),
            V('v_cvt_pk_bf16_f32', v(R.w4a[j]), t2, t0), V('v_cvt_pk_bf16_f32', v(R.w4b[j]), t1, t3),
            V('v_cvt_u32_f32', t4, t4),
            V('v_cndmask_b32', t0, t0, t1), V('v_cndmask_b32', t5, PPQ, v(R.Psel)),
            S('s_or_b64', sr(FAR+2*j, 2), sr(FAR+2*j, 2), sT2),
            V('v_cvt_pk_bf16_f32', v(R.w2[j]), t2, t0), V('v_add_u32', t5, t5, t4),
            S('s_or_b64', sr(FF+2*j, 2), sr(FF+2*j, 2), sr(FAR+2*j, 2)),
            V('v_lshl_or_b32', v(R.pair[j]), t5, 16, t4),
            S('s_mov_b64', sr(IRR+2*j, 2), sIrrT),
        ]
    def params_next(s):
        return [
            S('s_add_u32', sA, sTb, sX), S('s_cmp_eq_u32', sX, 6), S('s_cselect_b32', sA, 12, sA), S('s_cselect_b32', sB, sR0, 0),
            S('s_mul_i32', sC, sA, 52), S('s_mul_i32', sWN, sA, 18432), S('s_lshr_b32', sC, sC, 8),
            S('s_mul_i32', sD, sC, 5), S('s_add_u32', sC, sC, sB), S('s_sub_u32', sD, sA, sD),
            S('s_sub_u32', sKyN, sC, 2), S('s_sub_u32', sKxN, sD, 2),
            S('s_mul_i32', sC, sC, RP), S('s_mul_i32', sD, sD, PP), S('s_add_u32', sC, sC, RP + PP), S('s_add_u32', sAN, sC, sD),
            S('s_mov_b32', sOffN, sOffN2),
        ]
    def params_n2(s):
        return [
            S('s_add_u32', sOffRun, sOffRun, 4),
            [S('s_cmp_eq_u32', sX, 5), S('s_cselect_b32', sOffN2, sOffSh, sOffRun)],
            [S('s_cmp_eq_u32', sX, 6), S('s_cselect_b32', sOffN2, BIG, sOffN2)],
        ]
    def tr_w(s, c):
        R = s.R; res = []
        for T in range(6):
            u, e = T >> 1, T & 1
            for h in range(2):
                res.append(DSR('ds_read_b64_tr_b16', v(R.Wf(c, T) + 2*h, 2), v(R.W1 if e else R.W0), c*6144 + h*1536 + 64*u, need={'Wst'}))
        return res
    def dma_w(s, i, first):
        R = s.R; allw = {f"v{k}" for k in range(R.W, R.W + 72)}
        d = DMA(v([R.D0, R.D1, R.D2][i % 3]), SW, sDm, 1024*(i % 4), res='Wst', need=allw if first else ())
        if i % 4 == 0:
            return [S('s_add_u32', 'm0', sWst, 4096*(i//4)), S('s_add_u32', sDm, sWN, 4096*(i//4)), d]
        return [d]

    def fillers(s, rho, mains, kind):
        R = s.R; mt = s.mt; ops = []
        if kind == 'pre':
            ops += [Op(i, prio=30) for i in s.tr_w(0) + s.tr_w(1)]
            return ops
        if rho == 0:
            ops += [Op(i, prio=20) for i in s.tr_w(2)]
        if kind == 'part': return ops
        if rho == 0:
            pn = s.params_next()
            pn = [pn[0], pn[1:4]] + pn[4:]
            ops += chain(pn, prio=60)
        if rho == 1: ops += chain(s.params_n2(), prio=60)
        nd = mt - 3
        if 1 <= rho <= nd:
            lo, hi = (rho-1)*18//nd, rho*18//nd
            ops += chain([s.dma_w(i, i == 0) for i in range(lo, hi)], prio=40)
        for j, (sl, kd) in s.place.items():
            if rho == sl: ops += chain(s.half1(j, kd), prio=55)
            if rho == sl + 1: ops += chain(s.half2(j), prio=55)
        if rho == mt - 2:
            ops += chain([S('s_mov_b32', sKyC, sKyN), S('s_mov_b32', sKxC, sKxN), S('s_mov_b32', sOffC, sOffN)], prio=70)
        if rho == mt - 1:
            ops += [Op(i, prio=30).after(mains[5], 0) for i in s.tr_w(0)]
            ops += [Op(i, prio=30).after(mains[11], 0) for i in s.tr_w(1)]
            ops += [Op(S('s_add_u32', sX, sX, 1), prio=70)]
        return ops

    def body(s, var, rho_acc, cur, nxt, nu, newtap, kind, rho):
        R = s.R
        mains = []
        if rho_acc is not None:
            for c in range(3):
                for T in range(6):
                    a = R.accr(rho_acc, T)
                    mains.append(Op(MF(a, v(R.Wf(c, T), 4), v(R.Xp(cur[c]), 4), a), mf=True))
        ops = s.fillers(rho, mains, kind)
        pre = []
        alias = (cur is not None and nxt is not None and nxt[2] == cur[0])
        def ndep(o, c):
            if c == 2 and alias: o.after(mains[5], 0)
            return o
        up = None
        if newtap:
            up = Op(V('v_add_u32', v(R.A0), sAN, v(R.Xr)), prio=1); ops.append(up)
        j, g = (nu >> 2, nu & 3) if nu is not None else (0, 0)
        if var == 'N':
            pass
        elif var == 'R':
            for c in range(3):
                for h in range(2):
                    o = Op(DSR('ds_read_b64', v(R.Xp(nxt[c]) + 2*h, 2), v(R.A0), nu*RP + 64*c + 16*h), prio=15 + c)
                    if up: o.after(up, 0)
                    ops.append(ndep(o, c))
        elif var in ('2', '4'):
            pa, pb, wa, wb = [v(x) for x in R.bp]
            b1 = Op(BPERM(pa, v(R.IA), v(R.pair[j]), 64*g), prio=2)
            b2 = Op(BPERM(pb, v(R.IA), v(R.pair[j]), 64*g + 4), prio=2)
            ops += [b1, b2]
            if var == '2':
                b3 = Op(BPERM(wa, v(R.IW), v(R.w2[j]), 64*g), prio=3); ops.append(b3); bw = [b3]
                a1 = chain([V('v_bfe_u32', pa, pa, v(R.Sh), 16), V('v_lshl_add_u32', pa, pa, 4, v(R.Lc))], 5, [(b1, LAT)])
                a2 = chain([V('v_bfe_u32', pb, pb, v(R.Sh), 16), V('v_lshl_add_u32', pb, pb, 4, v(R.Lc))], 5, [(b2, LAT)])
            else:
                b3 = Op(BPERM(wa, v(R.IW), v(R.w4a[j]), 64*g), prio=3)
                b4 = Op(BPERM(wb, v(R.IW), v(R.w4b[j]), 64*g), prio=3); ops += [b3, b4]; bw = [b3, b4]
                a1 = chain([V('v_and_b32', pa, 0xffff, pa), V('v_lshl_add_u32', pa, pa, 4, v(R.Lc)), V('v_mad_u32_u24', pa, v(R.Sh), PPQ, pa)], 5, [(b1, LAT)])
                a2 = chain([V('v_and_b32', pb, 0xffff, pb), V('v_lshl_add_u32', pb, pb, 4, v(R.Lc)), V('v_mad_u32_u24', pb, v(R.Sh), PPQ, pb)], 5, [(b2, LAT)])
            ops += a1 + a2
            nu_ = 1 if var == '2' else 2
            bb = []
            for u in range(nu_):
                l = [Op(V('v_cndmask_b32_e64', v(R.B + 4*u + d), 0, [wa, wb][u], sMask[d]), prio=8).after(bw[u], LAT) for d in range(4)]
                bb.append(l); ops += l
            ring = [None]*6; k = 0; cvts = {}
            for c in range(3):
                dset = R.D + 8*(c & 1)
                last = []
                for u in range(nu_):
                    for t in range(2):
                        slot = k % 6; k += 1
                        ar = R.A + 4*slot
                        rd = []
                        for h in range(2):
                            o = Op(DSR('ds_read_b64_tr_b16', v(ar + 2*h, 2), [pa, pb][h], 64*c + 16*t + u*RP), prio=6)
                            o.after([a1, a2][h][-1], 4)
                            if ring[slot]: o.after(ring[slot], 0)
                            rd.append(o)
                        ops += rd
                        dd = v(dset + 4*t, 4)
                        im = Op(MF(dd, v(ar, 4), v(R.B + 4*u, 4), 0 if u == 0 else dd), mf=True, prio=k)
                        for o in rd: im.after(o, LAT)
                        for o in bb[u]: im.after(o, 12)
                        if u == 1: im.after(last[t], 16)
                        if u == 0 and c == 2:
                            for o in cvts[0]: im.after(o, 4)
                        ring[slot] = im; ops.append(im)
                        if u == 0: last.append(im)
                        else: last[t] = im
                cv = []
                for q in range(4):
                    t = q >> 1
                    o = Op(V('v_cvt_pk_bf16_f32', v(R.Xp(nxt[c]) + q), v(dset + 2*q), v(dset + 2*q + 1)), prio=7).after(last[t], 52)
                    cv.append(ndep(o, c))
                cvts[c] = cv; ops += cv
        elif var == 'F':
            pre = [S('s_add_u32', sFarY, sKyC, nu), S('s_add_u32', sFarO, sOffC, nu*22400), RAW(f"s_call_b64 {sRet}, {s.L('far')}")]
            for q in range(12):
                ops.append(ndep(Op(V('v_mov_b32', v(R.Xp(nxt[q >> 2]) + (q & 3)), v(R.D + q)), prio=12), q >> 2))
        ins, cyc = schedule(mains, ops, pre=4, lastcap=0)
        return pre + ins, cyc

    def fld(s, base, nu):
        j, g = nu >> 2, nu & 3
        return S('s_and_b32', sH, f"s{base + 2*j + (g >> 1)}", 0xffff0000 if g & 1 else 0xffff)

    def slots(s, name, descr, entry, endR, end2, kind):
        lineR, line2, slow = [], [], []
        st = entry
        n = len(descr)
        for idx, (rho, ra, cur, nxt, nu, newtap) in enumerate(descr):
            lab = lambda x, k=idx: s.L(f"{name}{x}{k}")
            outs = []
            def gen(var):
                a = Asm(); a.st = st.copy()
                ins, cyc = s.body(var, ra, cur, nxt, nu, newtap, kind, rho)
                a.emit(ins); outs.append(a.st)
                s.stats.append((name, idx, var, cyc, a.nops, a.n))
                return a.out
            if nu is None:
                lineR.append(lab('R') + ':'); lineR.append(lab('H') + ':')
                lineR += gen('N')
                line2.append(f"s_branch {lab('R')}")
                st = State.merge(outs)
                continue
            lineR += [lab('R') + ':', s.fld(IRR, nu).t, f"s_cbranch_scc1 {lab('H')}", lab('Rb') + ':'] + gen('R')
            line2 += [lab('H') + ':', s.fld(FF, nu).t, f"s_cbranch_scc1 {lab('S')}", s.fld(IRR, nu).t, f"s_cbranch_scc0 {lab('Rb')}"] + gen('2')
            nl = s.L(f"{name}H{idx+1}") if idx + 1 < n else s.L(f"{name}E2")
            slow += [lab('S') + ':', s.fld(FAR, nu).t, f"s_cbranch_scc1 {lab('F')}"] + gen('4') + [f"s_branch {nl}"]
            slow += [lab('F') + ':'] + gen('F') + [f"s_branch {nl}"]
            st = State.merge(outs)
        return lineR + endR, line2 + [s.L(f"{name}E2") + ':'] + end2, slow, st

    def far_sub(s):
        R = s.R; a = Asm()
        a.label(s.L('far'))
        acc = R.A; Lr = R.D
        t = [R.D + 12 + i for i in range(4)] + [R.B + i for i in range(8)] + list(R.bp)
        t = [v(x) for x in t]
        o, py, px, y0, x0, wy, wx, lp, c00, c01, c10, c11, iy1, ix1, adr, tt = t
        e = a.emit
        e(V('v_mul_u32_u24', adr, 25, v(R.IW)))
        e(BL('buffer_load_dword', o, adr, SO, sFarO))
        e(S('s_add_u32', sFarY, sFarY, sH0))
        e(V('v_mul_u32_u24', lp, 52, v(R.IW))); e(V('v_sub_u32', lp, v(R.Xr), lp))
        e(V('v_cvt_f32_i32', y0, sFarY)); e(V('v_add_u32', x0, sKxC, v(R.ix))); e(V('v_cvt_f32_i32', x0, x0))
        e(V('v_lshlrev_b32', py, 16, o)); e(V('v_and_b32', px, 0xffff0000, o))
        e(V('v_add_f32', py, py, y0)); e(V('v_add_f32', px, px, x0))
        e(V('v_med3_f32', py, py, 0, sF223)); e(V('v_med3_f32', px, px, 0, sF223))
        e(V('v_cvt_pk_bf16_f32', o, py, px))
        e(V('v_lshlrev_b32', py, 16, o)); e(V('v_and_b32', px, 0xffff0000, o))
        e(V('v_floor_f32', y0, py)); e(V('v_floor_f32', x0, px))
        e(V('v_sub_f32', wy, py, y0)); e(V('v_sub_f32', wx, px, x0))
        e(V('v_sub_f32', py, 1.0, wy)); e(V('v_sub_f32', px, 1.0, wx))
        e(V('v_mul_f32', c00, py, px)); e(V('v_mul_f32', c01, py, wx)); e(V('v_mul_f32', c10, wy, px)); e(V('v_mul_f32', c11, wy, wx))
        e(V('v_cvt_u32_f32', y0, y0)); e(V('v_cvt_u32_f32', x0, x0))
        e(V('v_add_u32', iy1, 1, y0)); e(V('v_add_u32', ix1, 1, x0))
        e(V('v_min_u32', iy1, 223, iy1)); e(V('v_min_u32', ix1, 223, ix1))
        e(V('v_mul_u32_u24', y0, 43008, y0)); e(V('v_mul_u32_u24', iy1, 43008, iy1))
        e(V('v_mul_u32_u24', x0, 192, x0)); e(V('v_mul_u32_u24', ix1, 192, ix1))
        for k, (yy, xx, w) in enumerate([(y0, x0, c00), (y0, ix1, c01), (iy1, x0, c10), (iy1, ix1, c11)]):
            e(V('v_add3_u32', adr, yy, xx, lp))
            for c in range(3):
                for h in range(2):
                    e(BL('buffer_load_dwordx2', v(Lr + 4*c + 2*h, 2), adr, SX, 0, 64*c + 16*h))
            for d in range(12):
                e(V('v_lshlrev_b32', tt, 16, v(Lr + d)))
                e(V('v_mul_f32' if k == 0 else 'v_fmac_f32', v(acc + 2*d), w, tt))
                e(V('v_and_b32', tt, 0xffff0000, v(Lr + d)))
                e(V('v_mul_f32' if k == 0 else 'v_fmac_f32', v(acc + 2*d + 1), w, tt))
        for d in range(12):
            e(V('v_cvt_pk_bf16_f32', v(Lr + d), v(acc + 2*d), v(acc + 2*d + 1)))
        a.line(f"s_setpc_b64 {sRet}")
        return a.out

    def epilogue(s, w, st):
        R = s.R; mt = s.mt; a = Asm(); a.st = st.copy(); e = a.emit
        E = [v(R.T[0]), v(R.T[1]), v(R.T[2])]; vo = v(R.T[3]); ln = v(R.T[4])
        a.out += stamp(4)
        e(V('v_mbcnt_lo_u32_b32', ln, -1, 0)); e(V('v_mbcnt_hi_u32_b32', ln, -1, ln))
        e(V('v_lshlrev_b32', E[0], 4, ln)); e(V('v_add_u32', E[1], 0x10000, E[0])); e(V('v_add_u32', E[2], 0x20000, E[0]))
        e(V('v_lshrrev_b32', ln, 4, ln)); e(V('v_mul_u32_u24', vo, 48, v(R.IW))); e(V('v_lshl_add_u32', vo, ln, 4, vo))
        def ad(k): return E[k >> 6], (k & 63)*1024
        rounds = [list(range(b, min(b + 8, mt))) for b in range(0, mt, 8)]
        for ri, rows in enumerate(rounds):
            a.wait(lg=0); a.line("s_barrier")
            for r in rows:
                ow = r & 3
                if ow == w: continue
                kk = (w - ow - 1) & 3
                for T in range(6):
                    b, o = ad((r - rows[0])*18 + kk*6 + T)
                    e(DSW('ds_write_b128', b, R.accr(r, T), o))
            a.wait(lg=0); a.line("s_barrier")
            own = [r for r in rows if (r & 3) == w]
            for r in own:
                P = R.W
                for T in range(6):
                    for kk in range(3):
                        b, o = ad((r - rows[0])*18 + kk*6 + T)
                        e(DSR('ds_read_b128', v(P + (T*3 + kk)*4, 4), b, o))
                e(S('s_add_u32', sA, sOutB, r*43008))
                Q = R.A
                for T in range(6):
                    for i in range(4):
                        ar = R.accr(r, T, 1, i); q = v(Q + 4*T + i)
                        p0, p1, p2 = [v(P + (T*3 + kk)*4 + i) for kk in range(3)]
                        if ar[0] == 'a':
                            e(V('v_accvgpr_read_b32', q, ar)); ar = q
                        e(V('v_add_f32', p1, p1, p2)); e(V('v_add_f32', q, ar, p0)); e(V('v_add_f32', q, q, p1))
                Z = R.D; O = R.X
                for T in range(6):
                    e(V('v_cvt_pk_bf16_f32', v(Z + 2*T), v(Q + 4*T), v(Q + 4*T + 1)))
                    e(V('v_cvt_pk_bf16_f32', v(Z + 2*T + 1), v(Q + 4*T + 2), v(Q + 4*T + 3)))
                for u in range(3):
                    for q in range(4):
                        e(V('v_cndmask_b32_e64', v(O + 4*u + q), v(Z + 4*u + q), v(Z + 4*u + (q ^ 2)), sOdd))
                a.line(f"s_cmp_le_u32 {sNv}, {r}"); a.line(f"s_cbranch_scc1 {s.L(f'sk{w}_{r}')}")
                sv = a.st.copy()
                for u in range(3):
                    e(BS('buffer_store_dwordx4', v(O + 4*u, 4), vo, SOUT, sA, 64*u))
                a.label(s.L(f'sk{w}_{r}'))
                a.st = State.merge([sv, a.st])
        a.out += prof_out()
        a.line("s_endpgm")
        return a.out

    def prologue(s):
        R = s.R; mt = s.mt; a = Asm(); e = a.emit
        a.label(s.L('start'))
        ln, n_, g_, r_, c_, t0, t1, t2 = [v(R.D + i) for i in range(8)]
        e(V('v_and_b32', ln, 63, 'v0'))
        e(V('v_and_b32', n_, 15, ln)); e(V('v_lshrrev_b32', g_, 4, ln)); e(V('v_bfe_u32', r_, ln, 2, 2)); e(V('v_and_b32', c_, 3, ln))
        e(V('v_mul_u32_u24', t0, 22400, g_)); e(V('v_mul_u32_u24', t1, 100, n_)); e(V('v_add_u32', v(R.OffV), t0, t1))
        e(S('s_mul_i32', sA, sH0, 224)); e(S('s_add_u32', sA, sA, sW0))
        e(S('s_mul_i32', sOutB, sA, 192)); e(S('s_mul_i32', sA, sA, 100))
        e(S('s_mul_i32', sTb, sWave, 6)); e(S('s_cmp_ge_u32', sWave, 2)); e(S('s_addc_u32', sTb, sTb, 0))
        e(S('s_mov_b32', sR0, s.r0[0]))
        for w in range(1, 4):
            e(S('s_cmp_eq_u32', sWave, w)); e(S('s_cselect_b32', sR0, s.r0[w], sR0))
        e(S('s_mul_i32', sOffSh, sR0, 22400)); e(S('s_add_u32', sOffSh, sOffSh, sA)); e(S('s_add_u32', sOffSh, sOffSh, 48))
        e(S('s_lshl_b32', sOffRun, sTb, 2)); e(S('s_add_u32', sOffRun, sOffRun, sA))
        e(S('s_mov_b32', sOffN2, sOffRun)); e(S('s_mov_b32', sX, 0))
        e(s.params_next())
        for j in range(R.ng):
            e(S('s_add_u32', sLd, sOffN, 4*j*22400)); e(BL('buffer_load_dword', v(R.off[j]), v(R.OffV), SO, sLd))
        e(s.params_n2())
        e(S('s_mov_b32', sX, 1))
        e(S('s_mov_b32', sKyC, sKyN)); e(S('s_mov_b32', sKxC, sKxN)); e(S('s_mov_b32', sOffC, sOffN))
        e(S('s_mul_i32', sWst, sWave, 18432)); e(S('s_add_u32', sWst, sWst, WST0))
        e(V('v_cmp_le_u32', 'vcc', 48, ln)); e(V('v_xor_b32', t0, 1, ln)); e(V('v_lshlrev_b32', t1, 4, ln)); e(V('v_lshlrev_b32', t0, 4, t0))
        e(V('v_cndmask_b32', v(R.D0), t1, t0))
        e(V('v_cmp_gt_u32', 'vcc', 32, ln)); e(V('v_and_b32', t2, 1, g_)); e(V('v_lshrrev_b32', v(R.Sh), 1, g_))
        e(V('v_cndmask_b32', v(R.D1), t1, t0))
        e(V('v_cmp_le_u32', 'vcc', 16, ln)); e(V('v_lshlrev_b32', v(R.Xr), 3, t2)); e(V('v_lshl_add_u32', v(R.Xr), v(R.Sh), 5, v(R.Xr)))
        e(V('v_cndmask_b32', v(R.D2), t1, t0))
        for i in range(18): e(s.dma_w(i, False))
        VO = [v(R.A + i) for i in range(5)]
        e(S('s_sub_u32', sB, sW0, 3))
        e(S('s_mov_b32', sC, BIG))
        for i in range(5):
            e(V('v_add_u32', t0, 64*i, ln)); e(V('v_mul_u32_u24', t1, 5042, t0)); e(V('v_lshrrev_b32', t1, 16, t1))
            e(V('v_mul_u32_u24', VO[i], 13, t1)); e(V('v_sub_u32', t0, t0, VO[i]))
            e(V('v_add_u32', t1, sB, t1)); e(V('v_max_i32', t1, 0, t1)); e(V('v_min_i32', t1, 223, t1))
            e(V('v_cmp_eq_u32', 'vcc', 12, t0))
            e(V('v_mul_u32_u24', t1, 192, t1)); e(V('v_lshl_add_u32', t1, t0, 4, t1)); e(V('v_mov_b32', t0, sC))
            e(V('v_cndmask_b32', VO[i], t1, t0))
        nrow = mt + 6
        nr = (nrow + 3)//4
        rowS = [f"s{36+k}" for k in range(nr)]; rowM = [f"s{44+k}" for k in range(nr)]
        e(S('s_sub_u32', sB, sH0, 3)); e(S('s_add_u32', sB, sB, sWave))
        for k in range(nr):
            e(S('s_add_u32', sC, sB, 4*k)); e(S('s_max_i32', sC, sC, 0)); e(S('s_min_i32', sC, sC, 223)); e(S('s_mul_i32', rowS[k], sC, 43008))
            e(S('s_add_u32', sC, sWave, 4*k)); e(S('s_mul_i32', rowM[k], sC, RP))
        def rows(iset):
            for k in range(nr):
                skip = 4*k + 3 >= nrow
                if skip:
                    a.line(f"s_cmp_ge_u32 {sWave}, {nrow - 4*k}"); a.line(f"s_cbranch_scc1 {s.L(f'ws{iset[0]}')}")
                for i in iset:
                    e(S('s_add_u32', 'm0', rowM[k], 1024*i)); e(DMA(VO[i], SX, rowS[k], 0, res='win'))
                if skip: a.label(s.L(f'ws{iset[0]}'))
        rows([0, 1, 2, 3])
        e(S('s_mov_b64', 'exec', (1 << 30) - 1))
        rows([4])
        e(S('s_mov_b64', 'exec', -1))
        a.st.vm = {k: min(x, 18) for k, x in a.st.vm.items()}
        e(V('v_mad_u32_u24', v(R.Xr), n_, v_const(a, t0, PP), v(R.Xr)))
        e(V('v_lshlrev_b32', v(R.IW), 2, n_))
        e(V('v_lshlrev_b32', t0, 4, v(R.Sh))); e(V('v_lshl_add_u32', t0, t2, 2, t0)); e(V('v_add_u32', t0, t0, r_)); e(V('v_mul_u32_u24', t0, 192, t0))
        e(V('v_xor_b32', t1, c_, t2)); e(V('v_lshl_add_u32', t0, t1, 4, t0)); e(V('v_add_u32', t0, sWst, t0))
        e(V('v_and_b32', t1, 1, c_)); e(V('v_lshl_add_u32', v(R.W0), t1, 3, t0)); e(V('v_xor_b32', v(R.W1), 8, v(R.W0)))
        e(V('v_lshlrev_b32', v(R.Lc), 3, t1)); e(V('v_lshrrev_b32', t1, 1, c_)); e(V('v_lshl_add_u32', v(R.Lc), t1, 5, v(R.Lc)))
        e(V('v_lshlrev_b32', v(R.IA), 4, t2)); e(V('v_lshl_add_u32', v(R.IA), v(R.Sh), 3, v(R.IA)))
        e(V('v_lshrrev_b32', t1, 1, r_)); e(V('v_lshl_add_u32', v(R.IA), t1, 5, v(R.IA)))
        e(V('v_and_b32', t1, 1, r_)); e(V('v_lshlrev_b32', v(R.Sh), 4, t1))
        e(V('v_add_u32', v(R.iy), sH0, g_)); e(V('v_add_u32', v(R.ix), sW0, n_))
        e(S('s_sub_u32', sB, sH0, 3)); e(S('s_sub_u32', sC, sW0, 3))
        e(V('v_cvt_f32_i32', v(R.Ylo), sB)); e(V('v_cvt_f32_i32', v(R.Xlo), sC))
        e(V('v_add_f32', t0, float(mt + 4), v(R.Ylo))); e(V('v_add_f32', t1, 20.0, v(R.Xlo)))
        e(V('v_mul_f32', v(R.C), float(-PPQ), v(R.Xlo))); e(V('v_fmamk_f32', v(R.C), v(R.Ylo), float(-RPQ), v(R.C)))
        e(V('v_readfirstlane_b32', sYhi, t0)); e(V('v_readfirstlane_b32', sXhi, t1))
        e(V('v_mov_b32', v(R.Psel), RPQ)); e(S('s_mov_b32', sF223, 223.0))
        pm = lambda g, h, j: (g & 1)*4 + (g >> 1)*2 + h + 8*j
        for d in range(4):
            m = sum(1 << (16*g + pm(g, d >> 1, d & 1)) for g in range(4))
            e(S('s_mov_b32', f"s{26+2*d}", m & 0xffffffff)); e(S('s_mov_b32', f"s{27+2*d}", m >> 32))
        e(S('s_mov_b32', 's34', 0xffff0000)); e(S('s_mov_b32', 's35', 0xffff0000))
        for r in range(mt):
            for T in range(6):
                for i in range(4):
                    x = R.accr(r, T, 1, i)
                    e(V('v_accvgpr_write_b32' if x[0] == 'a' else 'v_mov_b32', x, 0))
        for j, (sl, kd) in s.place.items():
            if kd == 'n':
                e(s.half1(j, 'n')); e(s.half2(j))
        a.out += stamp(1)
        a.wait(vm=0); a.line("s_barrier")
        a.out += stamp(2)
        return a.out, a.st

    def gen(s):
        mt = s.mt; pool = s.pool
        out, st = s.prologue()
        lr, l2, sl, st0 = s.slots('q', [(None, None, None, pool[0], 0, True)], st, [f"s_branch {s.L('mR0')}"], [f"s_branch {s.L('mH0')}"], 'pre')
        pre = lr + l2 + sl
        descr = [(r, r, pool[r], pool[(r+1) % mt], (r+1) % mt, r == mt-1) for r in range(mt)]
        entry = st0
        endR = [f"s_cmp_lt_u32 {sX}, 7", f"s_cbranch_scc1 {s.L('mR0')}", f"s_branch {s.L('part')}"]
        end2 = [f"s_cmp_lt_u32 {sX}, 7", f"s_cbranch_scc1 {s.L('mH0')}", f"s_branch {s.L('part')}"]
        keep = len(s.stats)
        for it in range(5):
            del s.stats[keep:]
            lr, l2, sl, ex = s.slots('m', descr, entry, endR, end2, 'loop')
            if entry.covers(ex): break
            entry = State.merge([entry, ex])
        else: assert False
        out += pre + ['.p2align 6'] + lr + l2 + sl
        out.append(s.L('part') + ':')
        out += stamp(3)
        for w in range(1, 4):
            out += [f"s_cmp_eq_u32 {sWave}, {w}", f"s_cbranch_scc1 {s.L(f'p{w}R0')}"]
        for w in range(4):
            n = s.rsz[w]; pl = solve_pool(n, closed=False)
            d = [(k, s.r0[w] + k, pl[k], pl[k+1] if k+1 < n else None, k+1 if k+1 < n else None, False) for k in range(n)]
            lr, l2, sl, e2 = s.slots(f'p{w}', d, ex, [], [], 'part')
            out += lr + s.epilogue(w, e2) + l2 + sl
        out += s.far_sub()
        return out

def v_const(a, tmp, val):
    a.emit(V('v_mov_b32', tmp, val)); return tmp

def decode(classes, variants):
    a = Asm(); e = a.emit
    sT, sI = sA, sB
    e(S('s_and_b32', sT, 's2', 7)); e(S('s_lshl_b32', sT, sT, 5)); e(S('s_lshr_b32', sC, 's2', 3)); e(S('s_add_u32', sT, sT, sC))
    for ci, (t0, ns, tps, st0, segs) in enumerate(classes):
        a.label(f"Lc{ci}")
        if ci + 1 < len(classes):
            a.line(f"s_cmp_ge_u32 {sT}, {classes[ci+1][0]}"); a.line(f"s_cbranch_scc1 Lc{ci+1}")
        else:
            a.line(f"s_cmp_ge_u32 {sT}, {t0 + ns*tps}"); a.line("s_cbranch_scc1 Lexit")
        e(S('s_sub_u32', sI, sT, t0))
        if ns > 1:
            mul = (65536 + tps - 1)//tps
            assert all((x*mul) >> 16 == x//tps for x in range(ns*tps))
            e(S('s_mul_i32', sC, sI, mul)); e(S('s_lshr_b32', sC, sC, 16)); e(S('s_mul_i32', sD, sC, tps)); e(S('s_sub_u32', sI, sI, sD))
            e(S('s_add_u32', sC, sC, st0)); e(S('s_lshl_b32', sW0, sC, 4))
        else:
            e(S('s_mov_b32', sW0, st0*16))
        i0, r0, step, var = segs[0]
        e(S('s_mov_b32', sH0, r0 - i0*step)); e(S('s_mov_b32', sNv, step)); e(S('s_mov_b32', sVar, var))
        for (i0, r0, step, var) in segs[1:]:
            e(S('s_cmp_ge_u32', sI, i0)); e(S('s_cselect_b32', sH0, r0 - i0*step, sH0)); e(S('s_cselect_b32', sNv, step, sNv)); e(S('s_cselect_b32', sVar, var, sVar))
        a.line("s_branch Ldec")
    a.label("Ldec")
    e(S('s_mul_i32', sC, sI, sNv)); e(S('s_add_u32', sH0, sH0, sC))
    e(S('s_sub_u32', sC, 224, sH0)); e(S('s_min_u32', sNv, sNv, sC))
    return a.out

def check_plan(classes, mts):
    cover = [[0]*224 for _ in range(14)]
    tot = 0
    for (t0, ns, tps, st0, segs) in classes:
        assert t0 == tot; tot += ns*tps
        for sidx in range(st0, st0 + ns):
            for i in range(tps):
                sg = [x for x in segs if x[0] <= i][-1]
                h0 = sg[1] + (i - sg[0])*sg[2]; nv = min(sg[2], 224 - h0)
                assert 0 <= h0 < 224 and nv <= mts[sg[3]], (h0, nv)
                for r in range(h0, h0 + nv): cover[sidx][r] += 1
    assert all(c == 1 for row in cover for c in row)
    return tot

def main():
    ap = argparse.ArgumentParser()
    ap.add_argument('-o', default='standalone__deformable_dcnv1__vision.s')
    ap.add_argument('--plan', default='u13')
    ap.add_argument('-v', action='store_true')
    ap.add_argument('--prof', type=int, default=0)
    args = ap.parse_args()
    global PROF
    PROF = args.prof
    if args.plan == 'u13':
        mts = [13]; classes = [(0, 14, 18, 0, [(0, 0, 13, 0)])]
    elif args.plan == 'u8':
        mts = [8]; classes = [(0, 14, 28, 0, [(0, 0, 8, 0)])]
    ntile = check_plan(classes, mts)
    nwg = (ntile + 31)//32*32 if ntile <= 256 else None
    assert ntile <= 256
    nwg = 256
    L = [f"; @launch grid=({nwg},1,1) block=(256,1,1) lds=163840",
         '.amdgcn_target "amdgcn-amd-amdhsa--gfx950"', '.text', f'.globl {NAME}', '.p2align 8', f'.type {NAME},@function', f'{NAME}:']
    L += [f"s_cmp_ge_u32 s2, {nwg}", "s_cbranch_scc1 Lexit"] + stamp(0) + [
          "s_load_dwordx2 s[4:5], s[0:1], 0", "s_load_dwordx2 s[8:9], s[0:1], 8", "s_load_dwordx2 s[12:13], s[0:1], 16", "s_load_dwordx2 s[16:17], s[0:1], 24",
          "v_lshrrev_b32 v1, 6, v0", "s_nop 0", f"v_readfirstlane_b32 {sWave}, v1"]
    L += decode(classes, mts)
    L += ["s_waitcnt lgkmcnt(0)"]
    for b, nrec in ((4, 9633792), (8, 5017600), (12, 460800), (16, 9633792)):
        L += [f"s_and_b32 s{b+1}, s{b+1}, 0xffff", f"s_mov_b32 s{b+2}, {nrec}", f"s_mov_b32 s{b+3}, 0x20000"]
    engines = [Mixed(mt, f"m{mt}") for mt in mts]
    for k, en in enumerate(engines[1:], 1):
        L += [f"s_cmp_eq_u32 {sVar}, {k}", f"s_cbranch_scc1 {en.L('start')}"]
    for en in engines:
        L += en.gen()
        if args.v:
            for st in en.stats: print(en.tag, st)
            print("vgprs", en.R.n)
    L += ["Lexit:", "s_endpgm"]
    L += ['.section .rodata,"a"', '.p2align 6', f'.amdhsa_kernel {NAME}']
    for x in ["next_free_vgpr 512", "next_free_sgpr 102", "accum_offset 256", "group_segment_fixed_size 0", "kernarg_size 48", "user_sgpr_count 2",
              "user_sgpr_kernarg_segment_ptr 1", "system_sgpr_workgroup_id_x 1"]:
        L.append("  .amdhsa_" + x)
    L.append(".end_amdhsa_kernel")
    open(args.o, 'w').write('\n'.join(L) + '\n')
    print("lines", len(L), "bytes", sum(len(x) + 1 for x in L))
main()
```
